```python
import torch

def _softmax(x, axis=-1):
    return torch.softmax(x, dim=axis)
def _gelu(x):
    return torch.nn.functional.gelu(x, approximate="tanh")
def _silu(x):
    return torch.nn.functional.silu(x)
def _sigmoid(x):
    return torch.sigmoid(x)
def _layernorm(x, axis=-1, eps=1e-5):
    m = x.mean(dim=axis, keepdim=True)
    v = x.var(dim=axis, keepdim=True, unbiased=False)
    return (x - m) / torch.sqrt(v + eps)
def _scatter_add(tgt, idx, src, axis=0):
    return tgt.clone().index_add_(axis, idx, src)
def _segment_sum(src, seg, n):
    out = torch.zeros((n,) + src.shape[1:], dtype=src.dtype)
    return out.index_add_(0, seg, src)
def _pad(x, pw):
    flat = tuple(v for pair in reversed(pw) for v in pair)
    return torch.nn.functional.pad(x, flat)

kernel_name = 'standalone__mha_block_cached__near_ridge'

def setup_inputs():

    _w = (lambda a: (lambda t: t.to(torch.bfloat16) if t.is_floating_point() else t)(torch.as_tensor(a)))
    B, Sq, D = 8, 288, 512
    H, Sk, Dh = 32, 1024, 128
    return {
        "x": _w((lambda *s: torch.randn(*s, dtype=torch.bfloat16) * 0.8)(B, Sq, D)),
        "k_cache": _w((lambda *s: torch.randn(*s, dtype=torch.bfloat16) * 0.8)(B, H, Sk, Dh)),
        "v_cache": _w((lambda *s: torch.randn(*s, dtype=torch.bfloat16) * 0.05)(B, H, Sk, Dh)),
        "wq": _w((lambda *s: torch.randn(*s, dtype=torch.bfloat16) * 0.8)(D, H * Dh) * (D ** -0.5)),
        "wo": _w((lambda *s: torch.randn(*s, dtype=torch.bfloat16) * 0.05)(H * Dh, D) * ((H * Dh) ** -0.5)),
    }

def reference(x, k_cache, v_cache, wq, wo):
    B, Sq, D = x.shape
    H, Dh = 32, 128
    q = (lambda x, *d: x.permute(*d))((x @ wq).reshape(B, Sq, H, Dh), 0, 2, 1, 3)
    scores = torch.einsum("bhqd,bhkd->bhqk", q, k_cache) * (Dh ** -0.5)
    p = _softmax(scores, axis=-1)
    o = torch.einsum("bhqk,bhkd->bhqd", p, v_cache)
    return (lambda x, *d: x.permute(*d))(o, 0, 2, 1, 3).reshape(B, Sq, H * Dh) @ wo
```

```python
import re

REG = re.compile(r'\b([vas])\[(\d+):(\d+)\]|\b([vas])(\d+)\b')
TRANS = ('v_exp_f32', 'v_log_f32', 'v_rcp_f32', 'v_rsq_f32', 'v_sqrt_f32')

def regs_of(op):
    out = []
    for m in REG.finditer(op):
        if m.group(1):
            out += [(m.group(1), i) for i in range(int(m.group(2)), int(m.group(3)) + 1)]
        else:
            out.append((m.group(4), int(m.group(5))))
    if re.search(r'\bm0\b', op): out.append(('m', 0))
    if re.search(r'\bvcc\b', op): out.append(('vcc', 0))
    if re.search(r'\bexec\b', op): out.append(('exec', 0))
    return out

class I:
    def __init__(self, text):
        self.text = text.strip()
        t = self.text.split(';')[0].strip()
        self.label = t.endswith(':')
        parts = t.split(None, 1)
        self.op = parts[0] if parts else ''
        ops = [o.strip() for o in parts[1].split(',')] if len(parts) > 1 else []
        self.ops = ops
        op = self.op
        self.w, self.r = [], []
        k = 'other'
        if self.label or op.startswith('.') or op == '': k = 'none'
        elif op.startswith('v_mfma'):
            k = 'mfma'; self.w = regs_of(ops[0]); self.ab = regs_of(ops[1]) + regs_of(ops[2]); self.c = regs_of(ops[3]); self.r = self.ab + self.c
        elif op.startswith('ds_read'):
            k = 'dsr'; self.w = regs_of(ops[0]); self.r = regs_of(ops[1].split()[0])
        elif op.startswith('ds_write'):
            k = 'dsw'; self.r = [x for o in ops for x in regs_of(o.split()[0])]
        elif op.startswith('buffer_load') or op.startswith('global_load'):
            if re.search(r'\blds\b', t):
                k = 'dma'; self.r = [x for o in ops for x in regs_of(o.split()[0])] + [('m', 0)]
            else:
                k = 'vload'; self.w = regs_of(ops[0]); self.r = [x for o in ops[1:] for x in regs_of(o.split()[0])]
        elif op.startswith('buffer_store') or op.startswith('global_store') or op.startswith('buffer_atomic') or op.startswith('global_atomic'):
            k = 'vstore'; self.r = [x for o in ops for x in regs_of(o.split()[0])]; self.data = regs_of(ops[0]) if op.startswith('buffer') else regs_of(ops[1])
        elif op.startswith('buffer_inv') or op.startswith('buffer_wbl2'): k = 'vmisc'
        elif op == 's_waitcnt': k = 'wait'
        elif op == 's_barrier': k = 'barrier'
        elif op == 's_nop': k = 'nop'
        elif op.startswith('s_cbranch') or op == 's_branch' or op == 's_endpgm': k = 'branch'
        elif op.startswith('s_load') or op.startswith('s_memtime') or op.startswith('s_memrealtime'):
            k = 'smem'; self.w = regs_of(ops[0]); self.r = [x for o in ops[1:] for x in regs_of(o)]
        elif op.startswith('s_cmp') or op.startswith('s_bitcmp'):
            k = 'salu'; self.r = [x for o in ops for x in regs_of(o)]
        elif op.startswith('s_'):
            k = 'salu'; self.w = regs_of(ops[0]) if ops else []; self.r = [x for o in ops[1:] for x in regs_of(o)]
        elif op.startswith('v_'):
            k = 'valu'
            self.w = regs_of(ops[0]); self.r = [x for o in ops[1:] for x in regs_of(o.split()[0])]
            if op.startswith('v_permlane') or op.startswith('v_swap'):
                self.w = regs_of(ops[0]) + regs_of(ops[1]); self.r = list(self.w)
            if op.startswith('v_fmac') or op.startswith('v_writelane'):
                self.r += regs_of(ops[0])
            if op.startswith('v_cmp'):
                pass
        self.k = k
        self.trans = op in TRANS or any(op == x + '_e32' for x in TRANS)
    def states(self):
        if self.k == 'none': return 0
        if self.k == 'nop': return int(self.ops[0], 0) + 1
        return 1
    def __repr__(self): return self.text

def check_hazards(seq, name=''):
    errs = []
    n = len(seq)
    for i, a in enumerate(seq):
        need = []
        if a.k == 'mfma':
            W = set(a.w); C = set(a.c)
            passes = 8 if '32x32' in a.op else 4
            dA = {4: 8, 8: 12}[passes]; dC = {4: 6, 8: 10}[passes]; dW = {4: 3, 8: 7}[passes]
            need.append((dA, lambda b, W=W: b.k == 'mfma' and W & set(b.ab), 'mfma D->A/B'))
            need.append((dC, lambda b, W=W, a=a: b.k == 'mfma' and (W & set(b.c)) and b.c != a.w, 'mfma D->partial C'))
            need.append((dA, lambda b, W=W: b.k in ('valu', 'dsw', 'vstore', 'dsr', 'vload', 'dma') and (W & (set(b.r) | set(b.w))), 'mfma D->valu/mem'))
            need.append((dW, lambda b, C=C: b.k == 'valu' and C & set(b.w), 'mfma C WAR'))
        if a.k == 'valu':
            W = set(x for x in a.w if x[0] in 'va')
            SW = set(x for x in a.w if x[0] in ('s', 'vcc'))
            need.append((2, lambda b, W=W: b.k == 'mfma' and W & set(b.r), 'valu->mfma'))
            need.append((2, lambda b, W=W: b.k == 'valu' and b.op.startswith('v_permlane') and W & set(b.r), 'valu->permlane'))
            need.append((2, lambda b, W=W: b.k == 'valu' and ('dpp' in b.text or 'row_' in b.text or 'quad_perm' in b.text) and W & set(b.r), 'valu->dpp'))
            need.append((1, lambda b, W=W: b.k == 'valu' and (b.op.startswith('v_readfirstlane') or b.op.startswith('v_readlane')) and W & set(b.r), 'valu->readlane'))
            if a.trans:
                need.append((1, lambda b, W=W: b.k == 'valu' and not b.trans and W & set(b.r), 'trans->valu'))
            if SW:
                need.append((5, lambda b, SW=SW: b.k in ('dma', 'vload', 'vstore') and SW & set(b.r), 'valu sgpr->vmem'))
                need.append((2, lambda b, SW=SW: b.k == 'valu' and SW & set(b.r), 'valu sgpr->valu'))
        if a.k == 'salu' and ('m', 0) in a.w:
            need.append((1, lambda b: b.k == 'dma', 'm0->dma'))
        if a.k == 'vstore' and ('x4' in a.op or 'x3' in a.op):
            D = set(a.data)
            need.append((2, lambda b, D=D: b.k == 'valu' and D & set(b.w), 'store data WAR'))
        for dist, pred, msg in need:
            st = 0
            for j in range(i + 1, n):
                if st >= dist: break
                b = seq[j]
                if b.k != 'none' and pred(b):
                    errs.append(f'{name}: {msg}: [{i}] {a.text}  ->  [{j}] {b.text}  states={st} need={dist}')
                st += b.states()
    return errs

class Gap:
    def __init__(self, mfma):
        self.m = I(mfma) if isinstance(mfma, str) else mfma
        self.sh = []
        self.mem = []
        self.valu = []
        self.post = []
        self.wait = None
        self.fence = []
        self.vm = None
    def cost(self):
        c = 0
        for x in self.mem: c += 2 if x.k in ('dma', 'vload', 'vstore') else 1
        for x in self.valu: c += 2 if x.trans else 1
        return c
    def lin(self):
        out = [self.m] if self.m else []
        if self.wait is not None or self.vm is not None:
            out.append(I('s_waitcnt ' + ' '.join(([f'vmcnt({self.vm})'] if self.vm is not None else []) + ([f'lgkmcnt({self.wait})'] if self.wait is not None else []))))
        return out + self.sh + self.mem + self.valu + self.post

def insert_lgkm(trace, age=5):
    changed = True
    while changed:
        changed = False
        issued = 0
        done = 0
        last = {}
        hist = []
        when = {}
        for i, g in enumerate(trace):
            if g.m is not None:
                need = max([last.get(r, 0) for r in g.m.r] + [0])
                assert need <= done, f'uncovered ds dependency at {g.m.text}'
            nxt = trace[i + 1] if i + 1 < len(trace) else None
            need = 0
            if nxt is not None and nxt.m is not None:
                need = max([last.get(r, 0) for r in nxt.m.r] + [0])
                here = [x for x in g.mem + g.valu + g.post if x.k == 'dsr']
                explicit = any(x.k == 'wait' and 'lgkmcnt(' in x.text for x in g.post)
                for x in here:
                    if set(x.w) & set(nxt.m.r) and not explicit:
                        raise Exception(f'ds read {x.text} directly before consumer {nxt.m.text}')
            for x in g.fence: need = max(need, when[id(x)])
            for x in g.valu + g.mem:
                if x.k in ('valu', 'dsw', 'vstore'): need = max([need] + [last.get(r, 0) for r in x.r])
            hist.append(issued)
            if need > done:
                old = hist[max(0, len(hist) - 1 - age)]
                n = min(issued - max(need, old), 15)
                if g.wait is None or g.wait > n:
                    g.wait = n; changed = True
            if g.wait is not None: done = max(done, issued - g.wait)
            for x in g.sh + g.mem + g.valu + g.post:
                if x.k in ('dsr', 'dsw'):
                    issued += 1; when[id(x)] = issued
                    for r in x.w: last[r] = issued
                if x.k == 'wait':
                    m = re.search(r'lgkmcnt\((\d+)\)', x.text)
                    if m: done = max(done, issued - int(m.group(1)))

def lin(gaps):
    out = []
    for g in gaps: out += g.lin()
    return out

def text(seq):
    return ''.join(('' if x.label else '    ') + x.text + '\n' for x in seq)

def parse(txt):
    return [I(l) for l in txt.split('\n') if l.strip() and not l.strip().startswith(';')]

def est_cycles(gaps):
    c = 0
    for g in gaps:
        nsh = len(g.sh) + (g.wait is not None or g.vm is not None)
        c += 4 * max(4, 2 + max(0, nsh - 1) + g.cost() + len(g.post))
    return c

def check_scc(seq, name=''):
    errs = []; lastw = None
    NOSCC = ('s_mov_b32', 's_mov_b64', 's_mul_i32', 's_cselect_b32', 's_cselect_b64', 's_movk_i32', 's_setprio', 's_sleep', 's_getreg_b32', 's_mul_hi_u32')
    for x in seq:
        if (x.op.startswith('s_cselect') and 's79' not in x.text) or x.op.startswith('s_cbranch_scc'):
            if lastw is None or not (lastw.op.startswith('s_cmp') or lastw.op.startswith('s_bitcmp')): errs.append(f'{name}: scc for {x.text} comes from {lastw}')
        if x.op == 's_addc_u32':
            if lastw is None or lastw.op != 's_add_u32' or lastw.w[0][1] + 1 != x.w[0][1]: errs.append(f'{name}: carry for {x.text} comes from {lastw}')
        if x.k == 'salu' and x.op not in NOSCC: lastw = x
    return errs

import subprocess
def sizes(seq):
    lines = []; idx = []
    for i, x in enumerate(seq):
        if x.k == 'none': continue
        t = x.text.split('\n')[0]
        if x.k == 'branch' and x.op != 's_endpgm': t = x.op + ' 1'
        lines.append(t); idx.append(i)
    r = subprocess.run(['llvm-mc', '-triple=amdgcn-amd-amdhsa', '-mcpu=gfx950', '-show-encoding'], input='\n'.join(lines) + '\n', capture_output=True, text=True)
    enc = re.findall(r'encoding: \[([^\]]*)\]', r.stdout)
    assert len(enc) == len(lines), (len(enc), len(lines), r.stderr[:500])
    out = [0] * len(seq)
    for i, e in zip(idx, enc): out[i] = len(e.split(','))
    return out

class Stub(I):
    def __init__(self, skip): super().__init__('.stub'); self.skip = skip

class Page(I):
    def __init__(self): super().__init__('.page')

def paginate(seq, nwaves=4):
    sz = sizes(seq)
    res = []; pos = None; k = 0
    def brk():
        nonlocal k, pos
        res.extend([I(f's_branch L_pg{k}'), I('.p2align 12'), I(f'L_stub{k}:'), I(f's_branch @STUB{k}'), I(f'L_pg{k}:')])
        k += 1; pos = 4
    for x, n in zip(seq, sz):
        if isinstance(x, Page): brk(); continue
        if isinstance(x, Stub):
            if x.skip: res.append(I(f's_branch L_pg{k}')); pos += 4
            pos = (pos + 63) // 64 * 64 + 4; assert pos < 4096
            res.extend([I('.p2align 6'), I(f'L_stub{k}:'), I(f's_branch @STUB{k}'), I(f'L_pg{k}:')]); k += 1
            continue
        if x.op == '.p2align' and pos is not None:
            a = 1 << int(x.ops[0]); pos = (pos + a - 1) // a * a
        if pos is not None and pos + n + 4 > 4096: brk()
        res.append(x)
        if pos is not None: pos += n
    for x in res:
        m = re.match(r's_branch @STUB(\d+)', x.text)
        if m:
            j = int(m.group(1)) + nwaves
            x.text = f's_branch L_stub{j}' if j < k else 's_branch L_warm_ret'
    return res, k
```

```python
import sys, math
from sched import *
import asmlib

class Cfg:
    nt_kv = ' nt'
    nt_x = ''
    nt_w = ''
    stamps = 0
    stk = 0
    dbgwg = -1
    dbgsel = ' 1245d6ac'
    warm = 1
    l2code = 1
    rot = 1
    o_store = ' sc1'
    k2_o = ' sc1'
    k2_w = ''
    touch = 2
    TL = 24
    TN = 2
    ntf = 0
    trev = 1
    trow = 312
    ntp = 1
    hack = 0
    vlast = ' nt'
    wfull = 0
    xlin = 0
    wlin = 1
    xt = 0
    pret = 0
    eg = 1
    NT = 5
    abl = ''
    kvrot = 0
    bsh = 1
    lastgap = 1
    age = 5
    LAT = 8
    qst = 1
    tord = ' 03124567'
    T0 = 4
    rev = 1
    sp = ' 3345555'
    qsh = 1
    FB = 5
    tw = ''
    tw15 = ''
    c3t = 0
    c3q = 0
    c3 = 1
    EX = 0
    cap = 5
    LA = 6
    mall = 3
    NC1 = 13
    qtouch = 0
    qrot = 4
    qblk = 1
    XB = 60
    esp = 4
    dsp = 5
    ksp = 12
    NR = 4
    ILV = 0
    wb = 0
    PX = 0
    retouch = 1
    PE = 2
    out_store = ''
    ones = (0, 4)
    NP = 21
    PRE = 0

C_SCALE = 128 ** -0.5 * math.log2(math.e)
import struct
def f32(x): return '0x%08x' % struct.unpack('<I', struct.pack('<f', x))[0]

KT = 16896
RT = 2 * KT
STG = 53760
XS_OFF = 32768; WQ_OFF = 36864
SCR = 2 * STG
QROW = 272
EPI = 4 * RT
LDS1 = 163840

vKA, vKB, vVA, vVB, vDMA = 10, 11, 12, 13, 14
vLq = {1: 14, 2: 15, 3: 89, 0: 88, 4: 91}
PB = (52, 56, 60, 16)
vDK, vDV, vWO, vTch, vDum = 88, 88, 90, 91, 92
vXO = 20; vXS = 24; vWQ = 25
vXo0, vXo1, vXs0, vXs1, vWlo, vWhi = 29, 30, 31, 32, 33, 34
vT = 36
vP = 52; vS = 64; vO = 96
aMx = 252; vMx4 = 9
sSlow = 101
XF = 9 * 16896 + 1024
L_LO, L_HI = 2.0 ** -32, 2.0 ** 40
vQ = 20
aQ = 0; aKA = 80; aVA = 112; aKB = 144; aVB = 176
vRA = (29, 36)
vTq = 42
sRs = 47
sDel = 65
sKr = 71
sMo = 72
sTS = 92
sTinc, sTof = 51, 46
aLq = {0: 240, 4: 244}; aOne = 248
WIMM = (0, 1032, 2112, 3144)
sX, sWQ, sK, sV, sO = 20, 24, 28, 32, 36
sW, sPar, sJ, sB, sH = 40, 41, 42, 43, 44
sKC, sSx, sSx2, sSw = 45, 48, 49, 50
sM0x, sM0s, sM0w = 52, 53, 54
sKoff, sVoff, sKb, sVb, sN, sKVw = 55, 56, 57, 58, 59, 60
sT0, sT1, sT2, sT3 = 61, 62, 63, 64
sSt = 66
sC1, sC2 = 76, 77
sWO = 80
sMt, sNt, sBp = 89, 90, 91
sOO, sOut, sFl = 20, 24, 92
sDb = 96

def vr(b, n): return f'v[{b}:{b+n-1}]' if n > 1 else f'v{b}'
def ar(b, n): return f'a[{b}:{b+n-1}]' if n > 1 else f'a{b}'
def sr(b, n=4): return f's[{b}:{b+n-1}]'
def mf(d, a, b, c): return f'v_mfma_f32_16x16x32_bf16 {d}, {a}, {b}, {c}'

def stamp(k, cfg):
    if not cfg.stamps: return []
    if cfg.stk == 1: return parse(f's_memtime s[{sSt+2}:{sSt+3}]\ns_waitcnt lgkmcnt(0)')
    if cfg.stk == 2: return parse(f's_memrealtime s[{sSt+2}:{sSt+3}]\ns_waitcnt lgkmcnt(0)')
    if cfg.stk == 3: return parse(f's_waitcnt lgkmcnt(0)')
    return parse(f"""
    s_memrealtime s[{sSt}:{sSt+1}]
    s_memtime s[{sSt+2}:{sSt+3}]
    s_waitcnt lgkmcnt(0)
    v_writelane_b32 v8, s{sSt}, {k}
    v_writelane_b32 v9, s{sSt+2}, {k}
""")

def stamp_dyn(base, sreg, mul, cfg):
    if cfg.stamps != 2: return []
    return parse(f"""
    s_memrealtime s[{sSt}:{sSt+1}]
    s_memtime s[{sSt+2}:{sSt+3}]
    s_cselect_b32 s79, 1, 0
    s_mov_b32 s78, m0
    s_mul_i32 m0, s{sreg}, {mul}
    s_add_u32 m0, m0, {base}
    s_waitcnt lgkmcnt(0)
    v_writelane_b32 v8, s{sSt}, m0
    v_writelane_b32 v9, s{sSt+2}, m0
    s_mov_b32 m0, s78
    s_cmp_eq_u32 s79, 1
""")

def stamp_out(cfg, region):
    if not cfg.stamps or cfg.stk: return []
    if cfg.dbgwg >= 0:
        sel = [int(c, 16) for c in cfg.dbgsel.strip()]
        o = parse(f"""
    s_cmp_lg_u32 s2, {cfg.dbgwg}
    s_cbranch_scc1 L_k1_end
    s_cmp_lg_u32 s{sW}, 0
    s_cbranch_scc1 L_k1_end
    v_readlane_b32 s{sT0}, v8, 0
""")
        for k, j in enumerate(sel):
            o += parse(f"""
    v_readlane_b32 s{sT1}, v8, {j}
    s_nop 3
    s_sub_u32 s{sT1}, s{sT1}, s{sT0}
    v_mov_b32 v10, s{sT1}
    buffer_store_dword v10, off, {sr(sFl)}, 0 offset:{8*k+4}
""")
        return o
    return parse(f"""
    s_add_u32 s{sDb}, s18, {0x8000000 + region * 0x100000}
    s_addc_u32 s{sDb+1}, s19, 0
    s_mov_b32 s{sDb+2}, 0x100000
    s_mov_b32 s{sDb+3}, 0x20000
    s_lshl_b32 s{sT0}, s2, 2
    s_add_u32 s{sT0}, s{sT0}, s{sW}
    s_lshl_b32 s{sT0}, s{sT0}, 9
    v_mbcnt_lo_u32_b32 v2, -1, 0
    v_mbcnt_hi_u32_b32 v2, -1, v2
    v_lshlrev_b32 v2, 3, v2
    buffer_store_dwordx2 v[8:9], v2, s[{sDb}:{sDb+3}], s{sT0} offen
""")

def k1_prologue(cfg):
    QT1 = f"""
    s_mul_i32 s{sT3}, s{sT3}, 36
    s_mul_i32 s{sT0}, s{sPar}, 18
    s_add_u32 s{sT3}, s{sT3}, s{sT0}
    v_add_u32 v4, s{sT3}, v0
    v_lshlrev_b32 v4, 10, v4
    s_lshl_b32 s{sT2}, s{sT2}, 4
    s_lshl_b32 s{sT0}, s{sPar}, 3
    s_add_u32 s{sT2}, s{sT2}, s{sT0}
    v_lshrrev_b32 v5, 1, v0
    v_add_u32 v5, s{sT2}, v5
    v_lshlrev_b32 v5, 13, v5
    v_and_b32 v6, 1, v0
    v_lshl_add_u32 v5, v6, 7, v5
    s_cmp_eq_u32 s{sJ}, 0
    s_cselect_b64 vcc, -1, 0
    s_cselect_b32 s{sT0}, 18, 16
    s_mov_b32 s{sTinc}, 0x80000
    s_cselect_b32 s{sTinc}, 128, s{sTinc}
    v_cndmask_b32 v4, v5, v4, vcc
    v_cmp_gt_u32 vcc, s{sT0}, v0
    v_mov_b32 v5, 0x10000000
    s_mov_b32 s{sTof}, s{sTinc}
    v_cndmask_b32 v{vTq}, v5, v4, vcc
""" if cfg.qtouch else ''
    QT2 = f"""
    s_cmp_eq_u32 s{sJ}, 0
    s_cselect_b32 s{sTS}, s{sX}, s{sWQ}
    s_cselect_b32 s{sTS+1}, s{sX+1}, s{sWQ+1}
    s_cselect_b32 s{sTS+2}, s{sX+2}, s{sWQ+2}
    s_mov_b32 s{sTS+3}, 0x20000
""" if cfg.qtouch else ''
    t = f"""
    s_cmp_ge_u32 s2, 256
    s_cbranch_scc1 L_k1_end
    s_load_dwordx16 s[4:19], s[0:1], 0
    v_lshrrev_b32 v1, 6, v0
    v_and_b32 v0, 63, v0
    v_readfirstlane_b32 s{sW}, v1
    s_and_b32 s{sT0}, s2, 7
    s_lshr_b32 s{sT1}, s2, 3
    s_and_b32 s{sB}, s{sT0}, 1
    s_lshl_b32 s{sB}, s{sB}, 2
    s_and_b32 s{sT2}, s{sT1}, 3
    s_add_u32 s{sB}, s{sB}, s{sT2}
    s_lshr_b32 s{sH}, s{sT0}, 1
    s_lshl_b32 s{sH}, s{sH}, 3
    s_lshr_b32 s{sT3}, s{sT1}, 2
    s_add_u32 s{sH}, s{sH}, s{sT3}
    s_lshl_b32 s{sKC}, s{sT2}, 1
    s_add_u32 s{sKC}, s{sKC}, s{sT3}
    s_and_b32 s{sKC}, s{sKC}, {cfg.qrot - 1}
    s_and_b32 s{sPar}, s{sW}, 1
    s_lshr_b32 s{sJ}, s{sW}, 1
{QT1}
    v_lshrrev_b32 v2, 3, v0
    v_lshrrev_b32 v3, 4, v0
    v_and_b32 v4, 7, v0
    v_xor_b32 v4, v4, v3
    v_lshlrev_b32 v4, 4, v4
    v_lshl_add_u32 v4, v2, 10, v4
    v_xor_b32 v5, 64, v4
    s_mul_i32 s{sT0}, s{sJ}, {9*16384}
    s_lshl_b32 s{sT1}, s{sPar}, 16
    s_add_u32 s{sT1}, s{sT1}, s{sT0}
    v_add_u32 v{vXO}, s{sT1}, v4
    s_add_u32 s{sT1}, s{sT1}, 7168
    v_add_u32 v{vXO+1}, s{sT1}, v5
    s_add_u32 s{sT1}, s{sT1}, 7168
    v_add_u32 v{vXO+2}, s{sT1}, v4
    s_add_u32 s{sT1}, s{sT1}, 7168
    v_add_u32 v{vXO+3}, s{sT1}, v5
    s_lshl_b32 s{sT1}, s{sPar}, 6
    v_xor_b32 v6, s{sT1}, v4
    s_lshl_b32 s{sT1}, s{sPar}, 13
    s_add_u32 s{sT0}, s{sT0}, s{sT1}
    s_add_u32 s{sT0}, s{sT0}, {8*16384}
    v_add_u32 v{vXS}, s{sT0}, v6
    v_lshrrev_b32 v5, 5, v0
    v_lshlrev_b32 v5, 18, v5
    v_and_b32 v6, 1, v3
    v_lshl_add_u32 v5, v6, 15, v5
    v_and_b32 v7, 15, v0
    v_lshl_add_u32 v5, v7, 4, v5
    s_lshl_b32 s{sT0}, s{sW}, 16
    v_add_u32 v{vWQ}, s{sT0}, v5
    v_add_u32 v{vWQ+1}, {8192-WIMM[1]}, v{vWQ}
    v_add_u32 v{vWQ+2}, {2*8192-WIMM[2]}, v{vWQ}
    v_add_u32 v{vWQ+3}, {3*8192-WIMM[3]}, v{vWQ}
    s_lshl_b32 s{sM0x}, s{sW}, 13
    s_lshl_b32 s{sM0s}, s{sW}, 10
    s_add_u32 s{sM0s}, s{sM0s}, {XS_OFF}
    s_mul_i32 s{sKVw}, s{sW}, {4*1056}
    s_add_u32 s{sM0w}, s{sKVw}, {WQ_OFF}
    s_waitcnt lgkmcnt(0)
    s_mul_i32 s{sT0}, s{sB}, 294912
    s_add_u32 s{sX}, s4, s{sT0}
    s_addc_u32 s{sX+1}, s5, 0
    s_mov_b32 s{sX+2}, 294912
    s_mov_b32 s{sX+3}, 0x20000
    s_lshl_b32 s{sT0}, s{sH}, 8
    s_add_u32 s{sWQ}, s10, s{sT0}
    s_addc_u32 s{sWQ+1}, s11, 0
    s_sub_u32 s{sWQ+2}, 0x400000, s{sT0}
    s_mov_b32 s{sWQ+3}, 0x20000
{QT2}
"""
    return parse(t)

def k1_prologue2(cfg):
    LA = cfg.LA; share = 13 * LA * 128; rowsA = 32 * share // 1024
    restB = (1 << 20) - 32 * share
    stepB = -(-restB // 256 // 13 // 4) * 4
    assert stepB <= 256
    MALL3 = f"""
    s_lshr_b32 s{sT0}, s2, 3
    s_mul_i32 s{sT0}, s{sT0}, {share}
    s_lshl_b32 s{sT1}, s{sW}, 20
    s_add_u32 s{sT0}, s{sT0}, s{sT1}
    v_lshl_add_u32 v4, v0, 7, s{sT0}
    s_mul_i32 s{sT0}, s2, {restB // 256}
    s_add_u32 s{sT0}, s{sT0}, s{sT1}
    s_add_u32 s{sT0}, s{sT0}, {32 * share}
    v_and_b32 v5, 1, v0
    v_lshl_add_u32 v5, v5, 7, s{sT0}
    v_cmp_gt_u32 vcc, {LA}, v0
    v_mov_b32 v6, {stepB}
    v_mov_b32 v{vTch}, {LA * 128}
    v_cndmask_b32 v{vDum+1}, v5, v4, vcc
    v_cndmask_b32 v{vTch}, v6, v{vTch}, vcc
""" if cfg.mall == 3 else ''
    t = f"""
    s_lshl_b32 s{sT0}, s{sW}, 12
    v_lshlrev_b32 v5, 4, v0
    v_add_u32 v{vDK}, s{sT0}, v5
    v_lshlrev_b32 v5, 12, v2
    v_and_b32 v6, 7, v0
    s_lshl_b32 s{sT0}, s{sW}, 1
    v_xor_b32 v6, s{sT0}, v6
    v_lshl_add_u32 v{vWO}, v6, 4, v5
    {'v_lshlrev_b32 v%d, 4, v0' % vWO if cfg.hack else ''}
    s_mov_b32 s{sC2}, {RT}
    s_lshl_b32 s{sT0}, s{sB}, 5
    s_add_u32 s{sT0}, s{sT0}, s{sH}
    s_lshl_b32 s{sT0}, s{sT0}, 18
    s_add_u32 s{sK}, s6, s{sT0}
    s_addc_u32 s{sK+1}, s7, 0
    s_mov_b32 s{sK+2}, 0x40000
    s_mov_b32 s{sK+3}, 0x20000
    s_add_u32 s{sV}, s8, s{sT0}
    s_addc_u32 s{sV+1}, s9, 0
    s_mov_b32 s{sV+2}, 0x40000
    s_mov_b32 s{sV+3}, 0x20000
    s_mul_i32 s{sT0}, s{sB}, 2359296
    s_lshl_b32 s{sT1}, s{sH}, 12
    s_add_u32 s{sT0}, s{sT0}, s{sT1}
    s_add_u32 s{sO}, s18, s{sT0}
    s_addc_u32 s{sO+1}, s19, 0
    s_sub_u32 s{sO+2}, 2359296, s{sT1}
    s_mov_b32 s{sO+3}, 0x20000
    s_and_b32 s{sBp}, s2, 7
    s_lshr_b32 s{sT1}, s2, 3
    s_and_b32 s{sMt}, s{sT1}, 3
    s_lshr_b32 s{sNt}, s{sT1}, 2
    s_xor_b32 s{sNt}, s{sNt}, {cfg.ntp}
    s_lshl_b32 s{sT0}, s{sW}, 20
    s_lshl_b32 s{sT1}, s{sNt}, {17 if cfg.hack else 7}
    s_add_u32 s{sT0}, s{sT0}, s{sT1}
    s_add_u32 s{sWO}, s12, s{sT0}
    s_addc_u32 s{sWO+1}, s13, 0
    s_sub_u32 s{sWO+2}, 0x400000, s{sT0}
    s_mov_b32 s{sWO+3}, 0x20000
    s_lshl_b32 s{sT0}, s2, 2
    s_add_u32 s{sT0}, s{sT0}, s{sW}
    s_lshl_b32 s{sT0}, s{sT0}, 12
    v_min_u32 v4, {31 if cfg.mall == 1 else 2}, v0
    v_lshlrev_b32 v4, 7, v4
    v_add_u32 v{vDum+1}, s{sT0}, v4
{MALL3}
    ; ---- LDS read addresses, Q phase. chunk c lives in stage (c+1)%3
    v_lshrrev_b32 v4, 1, v7
    v_xor_b32 v4, v4, v3
    v_lshlrev_b32 v4, 4, v4
    v_lshl_add_u32 v4, v7, 7, v4
    v_xor_b32 v5, 64, v4
    v_add_u32 v{vRA[0]}, s{sM0x}, v4
    v_add_u32 v{vRA[0]+1}, s{sM0x}, v5
    s_lshl_b32 s{sT0}, s{sJ}, 11
    s_add_u32 s{sT0}, s{sT0}, {XS_OFF}
    v_add_u32 v{vRA[0]+2}, s{sT0}, v4
    v_add_u32 v{vRA[0]+3}, s{sT0}, v5
    v_lshrrev_b32 v4, 2, v0
    v_lshlrev_b32 v4, 10, v4
    v_lshrrev_b32 v5, 3, v0
    v_lshl_add_u32 v4, v5, 6, v4
    v_bfe_u32 v5, v0, 2, 1
    v_lshl_add_u32 v4, v5, 3, v4
    v_and_b32 v5, 3, v0
    v_lshl_add_u32 v4, v5, 4, v4
    s_lshl_b32 s{sT0}, s{sPar}, 7
    s_add_u32 s{sT1}, s{sT0}, {WQ_OFF}
    v_add_u32 v{vRA[0]+4}, s{sT1}, v4
    s_sub_u32 s{sT1}, {WQ_OFF + 128}, s{sT0}
    v_add_u32 v{vRA[0]+5}, s{sT1}, v4
    v_add_u32 v{vRA[1]}, {2*STG}, v{vRA[0]}
    v_add_u32 v{vRA[1]+1}, {2*STG}, v{vRA[0]+1}
    v_add_u32 v{vRA[1]+2}, {2*STG}, v{vRA[0]+2}
    v_add_u32 v{vRA[1]+3}, {2*STG}, v{vRA[0]+3}
    v_add_u32 v{vRA[1]+4}, {2*STG}, v{vRA[0]+4}
    v_add_u32 v{vRA[1]+5}, {2*STG}, v{vRA[0]+5}
    s_lshl_b32 s{sT0}, s{sJ}, 12
    s_add_u32 s{sT0}, s{sT0}, {SCR}
    v_lshlrev_b32 v5, 4, v0
    v_add_u32 v95, s{sT0}, v5
    s_lshl_b32 s{sT0}, s{sPar}, 11
    v_add_u32 v94, s{sT0}, v95
    s_mov_b32 s70, {f32(C_SCALE)}
    s_lshr_b32 s{sKr}, s2, 4
    s_mul_i32 s{sT0}, s2, 5
    s_add_u32 s{sKr}, s{sKr}, s{sT0}
    s_and_b32 s{sKr}, s{sKr}, {15 if cfg.kvrot else 0}
    s_lshl_b32 s{sKr}, s{sKr}, 14
    s_lshl_b32 s78, s{sW}, 12
    s_lshl_b32 s79, s{sW}, 8
    v_lshrrev_b32 v4, 2, v0
    v_mul_u32_u24 v4, 1056, v4
    v_and_b32 v5, 3, v0
    v_lshl_add_u32 v4, v5, 3, v4
    s_lshl_b32 s{sT0}, s{sPar}, 9
    s_add_u32 s{sT1}, s{sT0}, {KT}
    v_add_u32 v{vVA}, s{sT1}, v4
    s_sub_u32 s{sT1}, {KT + 512}, s{sT0}
    v_add_u32 v{vVB}, s{sT1}, v4
    v_mul_u32_u24 v4, 1056, v7
    v_lshl_add_u32 v4, v3, 4, v4
    v_add_u32 v{vKA}, s{sT0}, v4
    s_sub_u32 s{sT1}, 512, s{sT0}
    v_add_u32 v{vKB}, s{sT1}, v4
"""
    seq = parse(t)
    for q in (1, 2, 3): seq.append(I(f'v_mov_b32 v{vLq[q]}, 0'))
    return seq

def q_chunk_dmas(cfg, c):
    stg = ((c + 1) % 3) * STG
    L = []
    nxt = [I(f's_add_u32 s{sKC}, s{sKC}, 1'), I(f's_and_b32 s{sKC}, s{sKC}, 7')]
    if cfg.qblk:
        nxt = [I(f's_add_u32 s{sKC}, s{sKC}, 1'), I(f's_and_b32 s{sKC}, s{sKC}, {cfg.qrot - 1}'), I(f's_or_b32 s{sKC}, s{sKC}, {(c + 1) & ~(cfg.qrot - 1)}')]
    px = ' nt' if cfg.ntf & 1 and c % cfg.qrot == 0 else cfg.nt_x
    pw = ' nt' if cfg.ntf & 2 and (c % cfg.qrot == 0 or (cfg.qrot == 8 and c == 1)) else cfg.nt_w
    for j in range(4):
        L.append(([I(f's_lshl_b32 s{sSw}, s{sKC}, 19'), I(f's_add_u32 m0, s{sM0w}, {stg}')] if j == 0 else [],
                  I(f'buffer_load_dwordx4 v{vWQ+j}, {sr(sWQ)}, s{sSw} offen offset:{WIMM[j]}{pw} lds')))
    for j in range(4):
        L.append(([I(f's_lshl_b32 s{sSx}, s{sKC}, 7'), I(f's_add_u32 m0, s{sM0x}, {stg}')] if j == 0 else [],
                  I(f'buffer_load_dwordx4 v{vXO+j}, {sr(sX)}, s{sSx} offen offset:{1024*j}{px} lds')))
    for j in range(4):
        L.append(([I(f's_add_u32 s{sSx2}, s{sSx}, 32768'), I(f's_add_u32 m0, s{sM0x}, {stg + 4096}')] if j == 0 else [],
                  I(f'buffer_load_dwordx4 v{vXO+j}, {sr(sX)}, s{sSx2} offen offset:{1024*j}{px} lds')))
    L.append((nxt + [I(f's_add_u32 m0, s{sM0s}, {stg}')], I(f'buffer_load_dwordx4 v{vXS}, {sr(sX)}, s{sSx} offen{px} lds')))
    return L

def q_touch(c):
    return [I(f's_mul_i32 s{sTof}, s{sTinc}, {c}')], I(f'buffer_load_dword v{vDum}, v{vTq}, {sr(sTS)}, s{sTof} offen')

def kv_dmas(cfg, srd, soff, base_reg=None, base_imm=None, vd=None, pol=None):
    L = []
    if vd is None: vd = vDK if srd == sK else vDV
    if pol is None: pol = cfg.nt_kv
    for j in range(4):
        if base_reg is not None: m = I(f's_add_u32 m0, s{base_reg}, {32*j}')
        else: m = I(f's_add_u32 m0, s{sKVw}, {base_imm + 32*j}')
        L.append((m, I(f'buffer_load_dwordx4 v{vd}, {sr(srd)}, {soff} offen offset:{1024*j}{pol} lds')))
    return L

QSET = (0, 144)
def q_reads(c):
    st = QSET[c & 1]; stage = (c + 1) % 3
    ra = vRA[stage == 2]; off = STG if stage == 1 else 0
    def A(dt):
        return [I(f'ds_read_b64_tr_b16 {ar(st+8*dt+4*s+2*h, 2)}, v{ra + 4 + (dt >= 4)} offset:{off + (2*s+h)*256 + ((dt>>1)&1)*64 + (dt&1)*8}') for s in range(2) for h in range(2)]
    def B(q):
        return [I(f'ds_read_b128 {ar(st+64+8*q+4*s, 4)}, v{ra + s + 2*(q == 4)} offset:{off + (2048*q if q < 4 else 0)}') for s in range(2)]
    R = A(0)[:2] + B(0)[:1] + A(0)[2:] + B(0)[1:]
    for q in range(1, 5): R += B(q)
    for dt in range(1, 8): R += A(dt)
    return R

def q_mfmas(c):
    st = QSET[c & 1]
    if c < 7: order = [(q, dt) for dt in range(8) for q in range(5 if dt < 4 else 4)]
    else: order = [(q, dt) for q in (4, 0, 1, 2, 3) for dt in range(4 if q == 4 else 8)]
    M = []
    for n, (q, dt) in enumerate(order):
        d = vr(vO + 32*q + 4*dt, 4)
        for i, s in enumerate((1, 0) if n & 1 and REV[0] else (0, 1)): M.append(Gap(mf(d, ar(st+8*dt+4*s, 4), ar(st+64+8*q+4*s, 4), '0' if c == 0 and i == 0 else d)))
    return M

def place_dmas(gaps, dmas, lo, hi):
    n = len(dmas)
    for j, (m, d) in enumerate(dmas):
        p = lo + 1 + int(j * (hi - lo - 1) / n)
        while gaps[p].mem or gaps[p].sh or (m is not None and gaps[p-1].sh): p += 1
        gaps[p].mem.append(d)
        gaps[p].nosh = True
        if m is not None: gaps[p-1].sh.append(m)

def place_shadow(gaps, ins, lo, hi):
    p = lo
    for x in ins:
        while gaps[p].sh or getattr(gaps[p], 'nosh', False) or gaps[p].wait is not None or gaps[p].vm is not None: p += 1
        assert p < hi, 'no shadow left'
        gaps[p].sh.append(x); p += 1

def place_pair(gaps, ins, p):
    ok = lambda g: not (g.sh or getattr(g, 'nosh', False) or g.wait is not None or g.vm is not None)
    while not all(ok(gaps[p + k]) for k in range(len(ins))): p += 1
    for k, x in enumerate(ins): gaps[p + k].sh.append(x)

def place_back(gaps, x, p):
    while gaps[p].sh or getattr(gaps[p], 'nosh', False) or gaps[p].wait is not None or gaps[p].vm is not None: p -= 1
    gaps[p].sh.append(x)

def place_mem(gaps, ins, lo, hi):
    n = len(ins); p = lo
    for j, x in enumerate(ins):
        p = max(p, lo + int(j * (hi - lo) / n))
        while gaps[p].cost() >= 2: p += 1
        assert p < hi + 3, 'reads do not fit'
        gaps[p].mem.append(x)

def place_valu(gaps, ins, lo, hi):
    p = lo
    for x in ins:
        while gaps[p].cost() >= 2: p += 1
        assert p < hi
        gaps[p].valu.append(x)

def put_vmem(gaps, p, pre, x):
    while gaps[p].cost() or gaps[p].sh or any(gaps[p-1-k].sh or getattr(gaps[p-1-k], 'nosh', False) for k in range(len(pre))): p += 1
    gaps[p].mem.append(x); gaps[p].nosh = True
    for k, y in enumerate(reversed(pre)): gaps[p-1-k].sh.append(y)
    return p

def feed(gaps, items, start=0):
    p = start
    for n, (e, x) in enumerate(items):
        p = max(p, e)
        while p < len(gaps):
            g = gaps[p]
            ok = g.cost() < 2 and not (x.k in ('dsr', 'dsw') and g.valu)
            if ok: break
            p += 1
        if p >= len(gaps): return [y for _, y in items[n:]]
        (gaps[p].mem if x.k in ('dsr', 'dsw') else gaps[p].valu).append(x)
    return []

def q_convert(par):
    it = []
    LAG = 6
    def tile(q, dt, done, dst):
        b = vO + 32*q + 4*dt
        return [(done, I(f'v_mul_f32 v{b+k}, s70, v{b+k}')) for k in range(4)] + \
               [(done, I(f'v_cvt_pk_bf16_f32 v{dst+k}, v{b+2*k}, v{b+2*k+1}')) for k in range(2)]
    for dt in range(4): it += tile(4, dt, 2*dt + 1 + LAG + 2, vP + 2*dt)
    sh = [(0, I(f'ds_write_b128 v94, {vr(vP + 4*k, 4)} offset:{1024*k}')) for k in range(2)]
    own = []
    for q in range(4):
        for dt in range(8):
            sp = (dt >> 1) ^ (2*par)
            t = vO + 32*q + 4*dt if q < 2 else vQ + 16*(q-2) + 4*sp + 2*(dt&1)
            own += tile(q, dt, 8 + 16*q + 2*dt + 1 + LAG, t)
            if q < 2: own += [(0, I(f'v_accvgpr_write_b32 a{aQ + 16*q + 4*sp + 2*(dt&1) + k}, v{t+k}')) for k in range(2)]
    return it, sh, own

UNITS = [(0, 0), (1, 0), (0, 1), (1, 1), (0, 2), (1, 2), (0, 3), (1, 3), (0, 4)]
PCOL = [0, 1, 2, 3, 0, 1, 2, 3, 1]
PVQ = [(4, None, 1, None), (3, 1, 2, 3), (0, 0, 0, 1), (0, 1, 0, 1), (1, 0, 2, 3), (1, 1, 2, 3), (2, 0, 0, 1), (2, 1, 0, 1), (3, 0, 2, 3)]
U15 = [(0, 0), (1, 0), (0, 4), (0, 1), (1, 1), (0, 2), (1, 2), (0, 3), (1, 3)]
PCOL15 = [0, 1, 2, 3, 0, 1, 2, 3, 0]
PVQ15 = PVQ[:4] + [(4, None, 2, None), (1, 0, 3, 0), (1, 1, 3, 0), (2, 0, 1, 2), (2, 1, 1, 2)]
NS = 3
def Sreg(u): return vS + 8 * (u % 3)
REV = [1]
def qk(u, unit):
    blk, q = unit; K = aKB if blk else aKA
    M = []
    for tt in range(2):
        for i, s in enumerate(range(3, -1, -1) if tt and REV[0] else range(4)):
            d = vr(Sreg(u) + 4*tt, 4)
            Q = vr(vQ + 16*(q-2) + 4*s, 4) if q in (2, 3) else ar(aQ + 16*q + 4*s, 4)
            M.append(mf(d, ar(K + 16*tt + 4*s, 4), Q, d if i else '0'))
    return M
def pv(cfg, spec, zero=False):
    q, half, ca, cb = spec
    O = lambda dt: vr(vO + 32*q + 4*dt, 4)
    if half is None: M = [mf(O(dt), ar(aVA + 4*dt, 4), vr(PB[ca], 4), O(dt)) for dt in range(8)]
    else:
        M = []
        for dt in range(4*half, 4*half + 4):
            two = [(aVA, ca), (aVB, cb)]
            if dt & 1 and REV[0]: two.reverse()
            M += [mf(O(dt), ar(V + 4*dt, 4), vr(PB[c], 4), '0' if zero and i == 0 else O(dt)) for i, (V, c) in enumerate(two)]
    if q in cfg.ones and not half:
        d = ar(aLq[q], 4)
        M.append(mf(d, ar(aOne, 4), vr(PB[ca], 4), '0' if zero else d))
        if cb is not None: M.append(mf(d, ar(aOne, 4), vr(PB[cb], 4), d))
    return M
def k_reads(blk):
    K, v = (aKB, vKB) if blk else (aKA, vKA)
    return [I(f'ds_read_b128 {ar(K + 16*tt + 4*s, 4)}, v{v} offset:{tt*256 + s*64}') for tt in range(2) for s in range(4)]
def v_reads(blk):
    V, v = (aVB, vVB) if blk else (aVA, vVA)
    return [I(f'ds_read_b64_tr_b16 {ar(V + 4*dt + 2*tt, 2)}, v{v} offset:{tt*256 + dt*32}') for dt in range(8) for tt in range(2)]

class Tile:
    def __init__(self, cfg, slow, first=False, final=False, delta=None):
        self.cfg = cfg
        units, col, pvq = (U15, PCOL15, PVQ15) if final else (UNITS, PCOL, PVQ)
        B = []; start = []
        for u in range(9):
            ms = qk(u + 1, units[u + 1] if u < 8 else UNITS[0]) if not (final and u == 8) else ['s_nop 0'] * 8
            ms += pv(cfg, pvq[u], zero=first) if not (first and u < 2) else ['s_nop 0'] * 8
            start.append(len(B)); B += [Gap(m) for m in ms]
        N = len(B); start.append(N)
        G = lambda u, k: start[u] + k
        self.B, self.N, self.G, self.units = B, N, G, units
        self.lastpos = lastpos = {q: max(i for i, x in enumerate(units) if x[1] == q) for q in range(5)}
        it = self.items = []
        for u in range(9):
            q = units[u][1]; S = Sreg(u); P = PB[col[u]]
            firstuse = min([k for k in range(u + 1, 9) if pvq[k][0] == q] + [99])
            if slow and q < 4: B[G(u, 0)].valu.append(I(f'v_accvgpr_read_b32 v{vDum}, a{aMx+q}'))
            for j in range(8):
                if slow: B[G(u, 2*j)].valu.append(I(f'v_sub_f32 v{S+j}, v{S+j}, v{vDum if q < 4 else vMx4}'))
                B[G(u, 2*j)].valu.append(I(f'v_exp_f32 v{S+j}, v{S+j}'))
                hi = (G(u + 2, 0) if u < 8 else N) - 1
                ha = G(u + 1, 3) if final and u == lastpos[q] and u < 8 else hi
                if q not in cfg.ones: it.append((G(u, 2*j+1), ha, I(f'v_add_f32 v{vLq[q]}, v{vLq[q]}, v{S+j}')))
                if j & 1: it.append((G(u, 2*j+1), min(hi, G(firstuse, 6) if firstuse < 9 else hi), I(f'v_cvt_pk_bf16_f32 v{P+j//2}, v{S+j-1}, v{S+j}')))
        LAT = cfg.LAT
        uses = lambda x, a, b: [p for p in range(a, b) if B[p].m.k == 'mfma' and set(x.w) & set(B[p].m.ab)]
        for x in v_reads(0) + v_reads(1):
            it.append((max(uses(x, 0, G(2, 0)) + [0]), min(uses(x, G(2, 0), N)) - LAT, x))
        if not final:
            for x in k_reads(0): it.append((max(uses(x, 0, G(8, 0))), min(uses(x, G(8, 0), N)) - min(LAT, 10), x))
            for x in k_reads(1): it.append((max(uses(x, 0, N)), min(N - 1, N + min(uses(x, 0, N)) - LAT), x))
            for r, lo, hi in ((vKA, G(1, 0), G(5, 15)), (vKB, G(1, 0), G(5, 15)), (vVA, G(4, 0), N - 1), (vVB, G(4, 0), N - 1)):
                it.append((lo, hi, I(f'v_add_u32 v{r}, {delta}, v{r}')))
        if first:
            z = [vr(vO + 96 + 16 + 4*k, 4) for k in range(4)] + [vr(vO + 128 + 4*k, 4) for k in range(8)] + [ar(aLq[4], 4)]
            for k, d in enumerate(z): B[G(k // 8, 8 + k % 8)].m = I(mf(d, ar(aOne, 4), vr(PB[3], 4), '0'))
            for k in range(4): B[G(0, 1 + 2*(k // 2))].valu.append(I(f'v_mov_b32 v{PB[3]+k}, 0'))
    def place(self):
        B, N = self.B, self.N
        for lo, hi, x in sorted(self.items, key=lambda e: (e[1] - e[0], e[1])):
            best = min(range(lo, hi + 1), key=lambda p: (max(B[p].cost(), 1) + 10 * getattr(B[p], 'nosh', False), p))
            (B[best].mem if x.k == 'dsr' else B[best].valu).append(x)

KPOS = [(6, 5), (7, 9), (8, 3), (8, 11)]
VPOS = [(1, 5), (3, 11), (4, 5), (5, 5)]
def tile_body(cfg, first=False, slow=False):
    T = Tile(cfg, slow, first=first, delta=f's{sDel}')
    gaps, G, N = T.B, T.G, T.N
    later = []
    dv = kv_dmas(cfg, sV, f's{sVoff}', base_reg=sVb); dk = kv_dmas(cfg, sK, f's{sKoff}', base_reg=sKb)
    for (m, d), pos in list(zip(dv, VPOS)) + list(zip(dk, KPOS)):
        gaps[G(*pos)].mem.append(d); gaps[G(*pos)].nosh = True; later.append(lambda m=m, pos=pos: place_back(gaps, m, G(*pos) - 1))
    if cfg.mall == 3:
        gaps[G(4, 11)].mem.append(I(f'buffer_load_dword v{vDum}, v{vDum+1}, {sr(sMo)}, 0 offen')); gaps[G(4, 11)].nosh = True
        T.items.append((G(4, 12), N - 1, I(f'v_add_u32 v{vDum+1}, v{vTch}, v{vDum+1}')))
    T.place()
    gaps[G(6, 0) - 1].vm = 9 if cfg.mall == 3 else 8
    gaps[G(6, 0)].sh.append(I('s_barrier'))
    sal0 = [I(f's_cmp_eq_u32 s{sRs}, {(NS-1)*RT}'), I(f's_cselect_b32 s{sDel}, {-(NS-1)*RT}, s{sC2}'), I(f's_add_u32 s{sKb}, s{sRs}, s{sKVw}')]
    later.append(lambda: place_pair(gaps, sal0, G(0, 0)))
    salv = [I(f's_add_u32 s{sVoff}, s{sVoff}, 16384'), I(f's_and_b32 s{sVoff}, s{sVoff}, 0x3ffff'), I(f's_add_u32 s{sVb}, s{sKb}, {KT}'), I(f's_add_u32 s{sRs}, s{sRs}, s{sDel}')]
    later.append(lambda: place_shadow(gaps, salv, G(6, 6), G(7, 6)))
    salk = [I(f's_add_u32 s{sKoff}, s{sKoff}, 16384'), I(f's_and_b32 s{sKoff}, s{sKoff}, 0x3ffff'), I(f's_add_u32 s{sN}, s{sN}, 1'), I(f's_cmp_lt_u32 s{sN}, 13')]
    later.append(lambda: place_shadow(gaps, salk, G(8, 12), N))
    return gaps, later

RBLK = [('a', b) for b in (32, 48, 208, 224, 0, 64, 16, 160, 176, 192, 240)] + [('v', b) for b in (224, 240, 16, 48, 64, 32, 80, 176, 192, 208)]
aRing = 80
def wo_reads(t, c):
    k, b = RBLK[t % len(RBLK)]
    return [I(f'ds_read_b64_tr_b16 {k}[{b+4*nt+2*h}:{b+4*nt+2*h+1}], v{vA[c//4]} offset:{(c%4)*KT + 512*h + 32*nt}') for nt in range(4) for h in range(2)]

def feed2(gaps, items, cap):
    p = 0; rest = []
    for e, sep, x in items:
        if rest:
            if sep: rest.append(I(f's_nop {sep - 1}'))
            rest.append(x); continue
        p = max(p + sep, e)
        mem = x.k in ('vstore', 'dsw', 'dsr')
        if mem: p += 1
        while p < len(gaps) and (gaps[p].cost() + (2 if x.trans or x.k == 'vstore' else 1) > cap or (x.k == 'vstore' and any(y.k in ('dma', 'vload', 'vstore') for y in gaps[p].mem))): p += 1
        if p >= len(gaps): rest += [I('s_nop 1'), x]; continue
        (gaps[p].mem if mem else gaps[p].valu).append(x)
        if x.k == 'vstore': gaps[p].nosh = True
    return rest

def c3_touch(va, vd, row0=384, n=20):
    return parse(f"""
    s_lshr_b32 s{sT0}, s2, 3
    s_mul_i32 s{sT0}, s{sT0}, {n*1024}
    s_lshl_b32 s{sT1}, s{sW}, 20
    s_add_u32 s{sT0}, s{sT0}, s{sT1}
    s_add_u32 s{sT0}, s{sT0}, {row0*1024 + 384}
    v_min_u32 v{va}, {n-1}, v0
    v_lshl_add_u32 v{va}, v{va}, 10, s{sT0}
    global_load_dword v{vd}, v{va}, s[12:13]
""")

def endgame(cfg, slow, vm):
    tag = 's' if slow else ''
    gaps = []; pres = []; needs = {}; cell = {}; rd = {}; cnt = [0]; marks = []
    assert cfg.trow + cfg.NT * cfg.TL * 4 <= 1024
    for n in (13, 14, 15):
        T = Tile(cfg, slow, final=n == 15, delta=RT if n == 13 else -(NS-1)*RT)
        B, G, N, items = T.B, T.G, T.N, T.items
        base = len(gaps)
        def vmem(pos, pre, x, tg, fence=None):
            g = B[G(*pos)]; assert not g.mem, pos
            g.mem.append(x); g.nosh = True; x.tag = tg
            if fence: g.fence += fence
            pres.append((base + G(*pos), pre))
        def wo(t, c, poss, fence=None):
            cell[t] = c
            for j, pos in enumerate(poss):
                vmem(pos, ([I(f's_mov_b32 s{sWs}, {32768*t}')] if j == 0 else []) + [I(f's_add_u32 m0, s{sKVw}, {c*KT + 32*j}')],
                     I(f'buffer_load_dwordx4 v{vWO}, {sr(sWO)}, s{sWs} offen offset:{1024*j}{cfg.tw15 if n == 15 else cfg.k2_w} lds'), ('w', t), fence if j == 0 else None)
        def reads(t, lo, hi):
            rd[t] = wo_reads(t, cell[t]); needs[base + lo] = needs.get(base + lo, []) + [('w', t)]
            for x in rd[t]: items.append((lo, hi, x))
        def touch(pos):
            cnt[0] += 1
            if slow or cnt[0] > cfg.NT: return
            vmem(pos, [], I(f'buffer_load_dword v{vDum}, v{vTch}, {sr(sWO)}, 0 offen'), 't')
            items.append((G(*pos) + 1, min(G(*pos) + 12, N - 1), I(f'v_subrev_u32 v{vTch}, {cfg.TL * 4096}, v{vTch}')))
        two = lambda a, b: [(a, 5), (a, 11), (b, 5), (b, 11)]
        if n == 13:
            for j, (m, d) in enumerate(kv_dmas(cfg, sV, f's{sVoff}', base_reg=sVb)): vmem((j // 2, 5 + 6*(j % 2)), [m], d, 'v15')
            wo(0, 6, two(2, 3)); wo(1, 7, two(4, 5)); wo(2, 8, [(6, 3), (6, 9), (7, 9), (7, 13)]); wo(3, 2, [(8, 1), (8, 5), (8, 9), (8, 13)])
            touch((3, 15)); touch((5, 15))
        if n == 14:
            wo(4, 3, two(0, 1)); reads(0, G(2, 8), G(4, 0)); reads(1, G(3, 8), G(4, 15))
            wo(5, 6, [(4, 5), (4, 11), (5, 1), (5, 5)], rd[0]); wo(6, 7, [(5, 9), (5, 13), (6, 3), (6, 9)], rd[1])
            wo(7, 4, [(7, 9), (7, 13), (8, 1), (8, 5)]); reads(2, G(5, 0), G(6, 15)); reads(3, G(7, 8), N - 1)
            touch((2, 5)); touch((3, 5)); touch((8, 11))
        if n == 15:
            wo(8, 8, two(0, 1), rd[2]); wo(9, 2, two(2, 3), rd[3]); touch((1, 15))
            for k in range(cfg.EX): reads(4 + k, G(3 + k, 8), G(4 + k, 15))
            wo(10, 0, [(6, 3), (6, 11), (7, 3), (7, 11)]); wo(11, 1, [(8, 1), (8, 5), (8, 9), (8, 13)])
        T.place()
        if cfg.stamps == 7:
            for u in (3, 6, 9): B[G(u, 0) - 1].post += stamp(20 + 3*(n - 13) + u // 3, cfg)
            marks += [base + G(u, 0) for u in (0, 3, 6)]
        B[G(6, 0) - 1].bar = {13: ['t14'], 14: ['k15', 'v15'], 15: []}[n]
        gaps += B
    GG = lambda u, k: base + G(u, k)
    OS = vO + 128
    tmp = 94
    def norm(b, ns, rc, soff, e):
        it = []
        for k in range(ns):
            it += [(e(k), 0, I(f'v_mul_f32 v{b+8*k+i}, v{rc}, v{b+8*k+i}')) for i in range(8)]
            it += [(0, 0, I(f'v_cvt_pk_bf16_f32 v{b+8*k+i}, v{b+8*k+2*i}, v{b+8*k+2*i+1}')) for i in range(4)]
            x = I(f'buffer_store_dwordx4 {vr(b+8*k,4)}, v2, {sr(sO)}, {soff} offen offset:{1024*k}{cfg.o_store}'); x.tag = 'st'
            it.append((0, 0, x))
        return it
    def reduce_l(q, e):
        l = vLq[q]
        return [(e, 0, I(f'v_mov_b32 v{tmp}, v{l}')), (0, 2, I(f'v_permlane32_swap_b32 v{tmp}, v{l}')), (0, 0, I(f'v_add_f32 v{l}, v{l}, v{tmp}')),
                (0, 0, I(f'v_mov_b32 v{tmp}, v{l}')), (0, 2, I(f'v_permlane16_swap_b32 v{tmp}, v{l}')), (0, 0, I(f'v_add_f32 v{l}, v{l}, v{tmp}'))]
    def own(q):
        u = [k for k in range(2, 9) if PVQ15[k][0] == q][0]
        it = reduce_l(q, GG(T.lastpos[q] + 1, 4)) if q not in cfg.ones else [(GG(u + 1, 4), 0, I(f'v_accvgpr_read_b32 v{vLq[q]}, a{aLq[q]}'))]
        it.append((0, 0, I(f'v_rcp_f32 v{tmp}, v{vLq[q]}')))
        it += [(a, 1 if i == 0 else b, x) for i, (a, b, x) in enumerate(norm(vO + 32*q, 4, tmp, f's{sSq+q}', lambda k: GG(u + k // 2, 8 + 4*(k % 2) + 3) + 5))]
        return it
    if cfg.c3 == 2 and not slow:
        ct = c3_touch(10, vDum); ct[-1].tag = 't'; gaps[GG(4, 2)].post += ct
    g = gaps[GG(5, 5)]
    g.post += [I(f'v_accvgpr_read_b32 v{vLq[4]}, a{aLq[4]}'), I(f's_cmp_eq_u32 s{sPar}, 0'), I(f's_cbranch_scc1 L_send_hi{tag}')]
    lo_send = [I(f'ds_write_b128 v3, {vr(OS+4*k, 4)} offset:{1024*k}') for k in range(4)] + [I(f'v_mov_b32 v{OS+k}, v{OS+16+k}') for k in range(16)]
    hi_send = [I(f'ds_write_b128 v3, {vr(OS+16+4*k, 4)} offset:{1024*k}') for k in range(4)]
    g.post += lo_send
    g.alt = [I(f's_branch L_sent{tag}'), I(f'L_send_hi{tag}:')] + hi_send + [I(f'L_sent{tag}:')]
    gaps[GG(5, 6)].mem.insert(0, I(f'ds_write_b32 v6, v{vLq[4]}'))
    gaps[GG(6, 0) - 1].post += [I('s_waitcnt lgkmcnt(0)')]
    xr = [I(f'ds_read_b32 v95, v7')] + [I(f'ds_read_b128 {vr(OS+16+4*k, 4)}, v4 offset:{1024*k}') for k in range(4)]
    for k, x in enumerate(xr): gaps[GG(6, (0, 2, 4, 6, 8)[k])].mem.insert(0, x)
    shared = [(GG(6, 14), 0, I(f'v_add_f32 v95, v{vLq[4]}, v95')), (0, 0, I(f'v_rcp_f32 v95, v95'))]
    shared += [(0, 1 if k == 0 else 0, I(f'v_add_f32 v{OS+k}, v{OS+k}, v{OS+16+k}')) for k in range(16)] + norm(OS, 2, 95, f's{sSq+4}', lambda k: 0)
    fin = [Gap(m) for m in pv(cfg, (3, 0, 3, 0)) + pv(cfg, (3, 1, 3, 0))]
    nr = 4 + cfg.EX
    for k in range(2):
        rd[nr] = wo_reads(nr, cell[nr]); needs[len(gaps) + 8*k] = [('w', nr)]
        assert RBLK[nr][1] < 176 or RBLK[nr][1] >= 208
        for j in range(8): fin[8*k + j].mem.append(rd[nr][j])
        nr += 1
    gaps[-1].post += [I('s_nop 1')]
    nf = len(gaps)
    gaps += fin
    rest = feed2(gaps, own(0) + own(1) + shared + own(2) + reduce_l(3, nf), cfg.cap)
    gaps[-1].post += rest
    if marks: print('est', [est_cycles(gaps[a:b]) for a, b in zip(marks, marks[1:] + [nf])], est_cycles(gaps[nf:]), file=sys.stderr)
    for p, g in enumerate(gaps):
        if p in needs:
            w = vm.need(*needs[p])
            if w: g.vm = int(re.search(r'\d+', w[0].text).group(0))
        for x in g.mem + g.post:
            if x.k in ('dma', 'vload', 'vstore'): vm.issue(x.tag)
        if hasattr(g, 'bar'): g.post += (vm.need(*g.bar) if g.bar else []) + [I('s_barrier')]
    def shadows():
        lo = 0
        for p, pre in sorted(pres, key=lambda e: e[0]):
            k = p - 1
            for x in reversed(pre):
                while k >= lo and (gaps[k].sh or getattr(gaps[k], 'nosh', False) or gaps[k].wait is not None or gaps[k].vm is not None): k -= 1
                if k < lo: gaps[p - 1].sh.insert(0, x)
                else: gaps[k].sh.append(x)
            lo = p + 1
    return gaps, shadows, cell, nr

def lin_alt(gaps):
    out = []
    for g in gaps: out += g.lin() + getattr(g, 'alt', [])
    return out

def code_touch(cfg, first_page, npages, lanes_log2, sel):
    if not cfg.l2code: return []
    return parse(f"""
    s_getpc_b64 s[{sSt}:{sSt+1}]
L_pc{first_page}:
    s_add_u32 s{sSt}, s{sSt}, L_code{first_page}-L_pc{first_page}
    s_addc_u32 s{sSt+1}, s{sSt+1}, 0
    s_lshl_b32 s{sT0}, s{sel}, {7 + lanes_log2}
    v_and_b32 v94, {(1 << lanes_log2) - 1}, v0
    v_lshlrev_b32 v94, 7, v94
    v_add_u32 v94, s{sT0}, v94
    v_min_u32 v94, L_k1_end-L_code{first_page}, v94
    v_mov_b32 v95, s{sSt+1}
    v_add_co_u32 v94, vcc, s{sSt}, v94
    s_nop 1
    v_addc_co_u32 v95, vcc, 0, v95, vcc
    global_load_dword v{vDum}, v[94:95], off
""")

def k1(cfg):
    REV[0] = cfg.rev
    out = []; trace = []
    def add(seq): out.extend(seq); trace.extend(seq)
    pro = k1_prologue(cfg)
    k = [i for i, x in enumerate(pro) if x.op == 'v_readfirstlane_b32'][0] + 1
    if cfg.stamps == 5: add(parse('s_memrealtime s[98:99]\ns_memtime s[100:101]'))
    add(pro[:k])
    add([I(f's_lshr_b32 s{sT1}, s2, 3'), I(f's_and_b32 s{sT1}, s{sT1}, 7'), I(f's_lshl_b32 s{sT1}, s{sT1}, 2'), I(f's_add_u32 s{sT1}, s{sT1}, s{sW}')] + code_touch(cfg, 0, 5, 3, sT1))
    add([I(f's_mov_b32 s{sSlow}, 0')]); out.append(I('L_again:'))
    add(pro[k:])
    if cfg.stamps: add([I('v_mov_b32 v8, 0'), I('v_mov_b32 v9, 0')])
    if cfg.stamps == 5: add(parse('v_writelane_b32 v8, s98, 0\nv_writelane_b32 v9, s100, 0') + stamp(3, cfg))
    else: add(stamp(0, cfg))
    vm = VM()
    def lin_dma(L, tag):
        for pre, d in L:
            add(pre + ([I('s_nop 0')] if pre else []) + [d]); vm.issue(tag)
    tord = [int(c) for c in cfg.tord.strip()] if cfg.qtouch else []
    for c in tord[:cfg.T0]:
        pre, x = q_touch(c); add(pre + [x]); vm.issue(('t', c))
    if cfg.qtouch == 2: add(vm.need(('t', 0)))
    wtouch = lambda j: I(f'global_load_dword v{vDum}, v{vTq}, s[{sMo}:{sMo+1}]')
    wadv = lambda: [I(f's_add_u32 s{sMo}, s{sMo}, 0x100000'), I(f's_addc_u32 s{sMo+1}, s{sMo+1}, 0')]
    if cfg.xlin:
        add(parse(f"""
    s_lshr_b32 s{sT0}, s2, 3
    s_lshl_b32 s{sT0}, s{sT0}, 2
    s_add_u32 s{sT0}, s{sT0}, s{sW}
    s_mul_i32 s{sT1}, s{sT0}, 9216
    s_lshr_b32 s{sT2}, s{sB}, 2
    s_mul_i32 s{sT2}, s{sT2}, 1179648
    s_add_u32 s{sT1}, s{sT1}, s{sT2}
    v_min_u32 v10, 35, v0
    v_lshl_add_u32 v10, v10, 7, s{sT1}
    global_load_dword v{vDum}, v10, s[4:5]
    v_add_u32 v10, 4608, v10
    global_load_dword v{vDum}, v10, s[4:5]
    s_lshl_b32 s{sT1}, s{sT0}, 13
    s_lshr_b32 s{sT2}, s{sH}, 3
    s_lshl_b32 s{sT2}, s{sT2}, 11
    s_add_u32 s{sT1}, s{sT1}, s{sT2}
    v_min_u32 v{vTq}, 15, v0
    v_lshl_add_u32 v{vTq}, v{vTq}, 7, s{sT1}
    s_mov_b32 s{sMo}, s10
    s_mov_b32 s{sMo+1}, s11
""") + [wtouch(0)] + wadv()); vm.issue('t', 3)
        if cfg.xlin == 2: add(vm.need('t'))
    if cfg.xt:
        add([I(f's_lshl_b32 s{sT0}, s2, 2'), I(f's_add_u32 s{sT0}, s{sT0}, s{sW}')])
        if cfg.xt & 1:
            add([I(f's_mul_i32 s{sT1}, s{sT0}, 2304'), I('v_min_u32 v10, 17, v0'), I(f'v_lshl_add_u32 v10, v10, 7, s{sT1}'), I(f'global_load_dword v{vDum}, v10, s[4:5]')]); vm.issue('t')
        if cfg.xt & 2:
            add([I(f's_lshl_b32 s{sT1}, s{sT0}, 12'), I('v_min_u32 v10, 31, v0'), I(f'v_lshl_add_u32 v10, v10, 7, s{sT1}'), I(f'global_load_dword v{vDum}, v10, s[10:11]')]); vm.issue('t')
    lin_dma(q_chunk_dmas(cfg, 0), ('c', 0))
    if cfg.xlin: add([wtouch(1)] + wadv()); vm.issue('t')
    if cfg.c3q:
        add(parse(f"""
    s_lshr_b32 s{sT0}, s2, 3
    s_lshl_b32 s{sT0}, s{sT0}, 2
    s_add_u32 s{sT0}, s{sT0}, s{sW}
    s_lshl_b32 s{sT0}, s{sT0}, 14
    s_lshr_b32 s{sT1}, s{sH}, 3
    s_lshl_b32 s{sT1}, s{sT1}, 11
    s_add_u32 s{sT0}, s{sT0}, s{sT1}
    s_add_u32 s{sT0}, s{sT0}, {256*8192 + 384}
    v_bfe_u32 v10, v0, 1, 1
    v_and_b32 v11, 1, v0
    v_lshl_add_u32 v10, v10, 13, s{sT0}
    v_lshl_add_u32 v10, v11, 10, v10
    global_load_dword v{vDum}, v10, s[10:11]
""")); vm.issue('t')
    if cfg.stamps == 3: add(stamp(21, cfg))
    add(k1_prologue2(cfg))
    pt = []
    if cfg.pret & 1: pt += [I(f'buffer_load_dword v{vDum}, off, {sr(sK)}, 0'), I(f'buffer_load_dword v{vDum}, off, {sr(sV)}, 0')]
    if cfg.pret & 2:
        pt += parse(f"""
    v_min_u32 v4, 2, v0
    v_mul_u32_u24 v4, 1179584, v4
    s_mul_i32 s{sT0}, s{sB}, 2359296
    v_add_u32 v5, s{sT0}, v4
    global_load_dword v{vDum}, v5, s[18:19]
    s_mul_i32 s{sT0}, s{sBp}, 2359296
    v_add_u32 v5, s{sT0}, v4
    global_load_dword v{vDum}, v5, s[18:19]
""")
    if cfg.pret & 4:
        pt += parse(f"""
    v_min_u32 v4, 1, v0
    v_mul_u32_u24 v4, 294784, v4
    s_mul_i32 s{sT0}, s{sBp}, 294912
    v_add_u32 v5, s{sT0}, v4
    global_load_dword v{vDum}, v5, s[14:15]
""")
    if cfg.pret & 8: pt += [I('v_mov_b32 v5, 0'), I(f'global_load_dword v{vDum}, v5, s[16:17] sc1')]
    if cfg.pret & 16: pt += [I(f'buffer_load_dword v{vDum}, off, {sr(sWO)}, 0')]
    add(pt); vm.issue('t', sum(x.k == 'vload' for x in pt))
    if cfg.warm:
        out.extend(parse(f"""
    s_cmp_eq_u32 s{sW}, 0
    s_cbranch_scc1 L_stub0
    s_cmp_eq_u32 s{sW}, 1
    s_cbranch_scc1 L_stub1
    s_cmp_eq_u32 s{sW}, 2
    s_cbranch_scc1 L_stub2
    s_branch L_stub3
L_warm_ret:
"""))
    else: out.append(I('L_warm_ret:'))
    if cfg.stamps == 3: add(stamp(22, cfg))
    c1 = q_chunk_dmas(cfg, 1)
    lin_dma(c1[:cfg.NC1], ('c', 1))
    if cfg.stamps == 3: add(stamp(23, cfg))
    add(vm.need(('c', 0)) + [I('s_barrier')])
    add(stamp(1, cfg))
    tb, l1 = tile_body(cfg)
    t0, l0 = tile_body(cfg, first=True)
    head = Gap(None); head.post = q_reads(0) + [I('s_waitcnt lgkmcnt(15)')]
    def build_q(par):
        P = [q_mfmas(c) for c in range(8)]
        gq = [Gap(m) for m in qk(0, UNITS[0])]
        gaps = [g for p in P for g in p] + gq
        BAR = {0: 36, **{p: 72*p for p in range(1, 8)}}
        q = [(0, y, ('c', 1)) for y in c1[cfg.NC1:]]
        for c in range(2, 8):
            e = 0 if c == 2 else BAR[c - 3]
            if cfg.T0 + c - 2 < len(tord): q.append((0, q_touch(tord[cfg.T0 + c - 2]), 't'))
            if cfg.xlin and c in (2, 3): q.append((0, ([], wtouch(c)), 't')); q.append(wadv())
            q += [(e, y, ('c', c)) for y in q_chunk_dmas(cfg, c)]
        if cfg.mall == 1: q.append((0, ([], I(f'global_load_dword v{vDum}, v{vDum+1}, s[12:13]')), 't'))
        kv = lambda srd, t, o: [([I(f's_add_u32 s{sSx}, s{sKr}, {16384*t}'), I(f's_and_b32 s{sSx}, s{sSx}, 0x3ffff')] * (j == 0) + [m], d) for j, (m, d) in enumerate(kv_dmas(cfg, srd, f's{sSx}', base_imm=o))]
        q += [(BAR[5], y, 'k0') for y in kv(sK, 0, 0) + kv(sV, 0, KT)]
        q += [(BAR[5], y, 'k1') for y in kv(sK, 1, RT)] + [(BAR[6], y, 'k1') for y in kv(sV, 1, RT + KT) + kv(sK, 2, 2*RT)]
        p = 2; order = []; spill = []
        for e in q:
            if isinstance(e, I):
                place_shadow(gaps, [e], lastp + 1, lastp + 4); continue
            if isinstance(e, list):
                place_pair(gaps, e, lastp + 1); p = max(p, lastp + 5); continue
            if p >= len(gaps) - 2:
                spill += list(e[1][0]) + [I('s_nop 0'), e[1][1]]; continue
            lastp = p = put_vmem(gaps, max(p, e[0] + len(e[1][0])), list(e[1][0]), e[1][1])
            order.append((p, e[2]))
            p += cfg.ksp if e[2] == 'k1' else (int(cfg.sp.strip()[e[2][1] - 1]) if e[2][0] == 'c' else cfg.dsp)
        for c in range(1, 8):
            lo, hi = (36, 68) if c == 1 else (72*(c-1), 72*c - 8)
            place_mem(gaps, q_reads(c), lo, hi)
        assert not feed(gaps, [(150, x) for x in tail_setup_valu()])
        shc, shw, own = q_convert(par)
        L = 72*7
        early = k_reads(0); late = []
        for k, x in enumerate(k_reads(1)):
            kk = k // 2
            while gq[kk].cost() >= 2: kk += 1
            gq[kk].mem.append(x)
        if not cfg.XB: place_mem(gaps, early, L, L + 14)
        assert not feed(gaps, [(L + e, x) for e, x in shc])
        pw = max(i for i, g in enumerate(gaps) if any(x in g.valu for _, x in shc)) + 1
        for k, (_, x) in enumerate(shw):
            while gaps[pw].cost(): pw += 1
            gaps[pw].mem.append(x); gaps[pw].mem.append(I('s_nop 0')); pw += 1
        qsr = [I(f'ds_read_b128 {ar(aQ+64+4*k, 4)}, v95 offset:{1024*k}') for k in range(4)]
        if cfg.XB:
            xb = L + cfg.XB; assert xb > pw + 2
            left = feed(gaps, [(xb, x) for x in early[:8] + qsr + early[8:]])
            late = left + late
        else:
            gaps[pw + 2].post += [I('s_waitcnt lgkmcnt(0)'), I('s_barrier')]
            for k in range(4):
                pw += 1
                while gaps[pw + 2].cost(): pw += 1
                gaps[pw + 2].mem.append(qsr[k])
        rest = feed(gaps, [(L + e, x) for e, x in own], L)
        gq[-1].post += late + spill + rest
        def qbar(p, n):
            g = gaps[p - 1]
            if cfg.qsh and not any(x.k in ('dsr', 'dsw', 'dma', 'vload') for x in g.mem):
                g.vm = n; g.wait = 0; gaps[p].sh.insert(0, I('s_barrier'))
            else: g.post += [I('s_waitcnt ' + (f'vmcnt({n}) ' if n is not None else '') + 'lgkmcnt(0)'), I('s_barrier')]
        v = VM(); v.n, v.tag, v.done = vm.n, dict(vm.tag), vm.done
        k = 0
        for pb in range(8):
            while k < len(order) and order[k][0] < BAR[pb]: v.issue(order[k][1]); k += 1
            if pb == 7 and cfg.XB:
                qbar(BAR[pb], None)
                BAR[7] = xb
                while k < len(order) and order[k][0] < BAR[pb]: v.issue(order[k][1]); k += 1
            tg = ('c', pb + 1) if pb < 7 else 'k0'
            assert all(o[1] != tg for o in order[k:]), f'{tg} not issued before its barrier'
            w = v.need(tg)
            n = re.search(r'\d+', w[0].text).group(0)
            qbar(BAR[pb], int(n))
        insert_lgkm([head] + gaps)
        return gaps
    ga = build_q(0); gb = build_q(1)
    L = 72*7
    assert text(lin(ga[:L])) == text(lin(gb[:L]))
    print('q phase est cycles', est_cycles(ga), file=sys.stderr)
    add(lin([head])); out.append(Page()); out.append(I('L_code0:'))
    for c in range(7):
        add(lin(ga[72*c:72*c+72]))
        if cfg.stamps == 3: add(stamp(24 + c, cfg))
    add(stamp(2, cfg))
    ap = parse(f"""
    s_mov_b32 s{sN}, 0
    s_add_u32 s{sVoff}, s{sKr}, 32768
    s_and_b32 s{sVoff}, s{sVoff}, 0x3ffff
    s_add_u32 s{sKoff}, s{sKr}, 49152
    s_and_b32 s{sKoff}, s{sKoff}, 0x3ffff
    s_add_u32 s{sVb}, s{sKVw}, {2*RT + KT}
    s_mov_b32 s{sRs}, 0
    s_mov_b32 s{sFl}, s16
    s_mov_b32 s{sFl+1}, s17
    s_mov_b32 s{sFl+2}, 256
    s_mov_b32 s{sFl+3}, 0x20000
    s_mov_b32 s{sMo}, s12
    s_mov_b32 s{sMo+1}, s13
    s_mov_b32 s{sMo+2}, 0x400000
    s_mov_b32 s{sMo+3}, 0x20000
""")
    if cfg.ones: ap += [I(f'v_mov_b32 v{vDum}, 0x3f803f80')] + [I(f'v_accvgpr_write_b32 a{aOne+k}, v{vDum}') for k in range(4)]
    out.extend([I(f's_cmp_eq_u32 s{sPar}, 0'), I('s_cbranch_scc1 L_q7even')] + lin(gb[L:]) + [I('s_branch L_q7done')] + [Stub(False)] * cfg.qst + [I('L_q7even:')] + lin(ga[L:]) + [Stub(True)] * cfg.qst + [I('L_q7done:')])
    for e in check_hazards(trace[-40:] + lin(gb[L:]) + ap + lin(t0), 'odd'): print(e, file=sys.stderr)
    trace.extend(lin(ga[L:]))
    add(ap)
    out.extend([I(f's_cmp_lg_u32 s{sSlow}, 0'), I('s_cbranch_scc1 L_slow')])
    add(stamp(4, cfg))
    def seed(ntouch):
        v = VM(); v.issue('t14', 4); v.issue('k15', 4); v.issue('t', ntouch); return v
    assert cfg.mall == 3
    vme = seed(cfg.l2code + cfg.c3t)
    eg, shadows, cell, nr = endgame(cfg, False, vme)
    insert_lgkm([head] + ga + t0 + tb + tb + eg, cfg.age)
    for f in l0 + l1 + [shadows]: f()
    def salu_setup(t0):
        p = 18
        for grp in tail_setup_salu():
            free_sh = lambda g: not (g.sh or getattr(g, 'nosh', False) or g.wait is not None or g.vm is not None)
            while not all(free_sh(t0[p + k]) for k in range(len(grp))): p += 1
            for k, x in enumerate(grp): t0[p + k].sh.append(x)
            p += len(grp)
        assert p < len(t0) - 12
    salu_setup(t0)
    out.append(Page()); add(lin(t0))
    add(stamp(5, cfg))
    out.append(Page()); out.append(I('.p2align 3')); out.append(I('L_tile:'))
    body = stamp_dyn(20, sN, 1, cfg) + lin(tb)
    for i, x in enumerate(body):
        if ('r' in cfg.abl and x.k == 'dsr') or ('e' in cfg.abl and x.trans) or ('d' in cfg.abl and x.k == 'dma') or ('c' in cfg.abl and x.op.startswith('v_cvt')) or ('a' in cfg.abl and x.op == 'v_add_f32'):
            body[i] = I('s_nop 0')
        if 'b' in cfg.abl and x.k == 'barrier': body[i] = I('s_nop 0')
        if 'w' in cfg.abl and x.k == 'wait': body[i] = I('s_nop 0')
        if 's' in cfg.abl and x.k == 'vload': body[i] = I('s_nop 0')
        if 'k' in cfg.abl and x.op == 'ds_read_b128': body[i] = I('s_nop 0')
        if 'm' in cfg.abl and x.trans: body[i] = I(x.text.replace('v_exp_f32', 'v_mov_b32'))
    out.extend(body); out.append(I('s_cbranch_scc1 L_tile'))
    trace.extend(lin(tb) + lin(tb))
    add(parse(f"""
    s_lshr_b32 s{sT1}, s2, 3
    s_mul_i32 s{sT2}, s{sT1}, {cfg.trow * 32}
    s_lshl_b32 s{sT3}, s{sNt}, 7
    s_mul_i32 s{sT1}, s{sT1}, {cfg.TL * 128}
    s_add_u32 s{sT1}, s{sT1}, {cfg.trow * 1024 + (cfg.NT - 1) * cfg.TL * 4096}
    s_sub_u32 s{sT1}, s{sT1}, s{sT3}
    v_lshl_add_u32 v94, v0, 7, s{sT1}
    v_or_b32 v95, 0x10000000, v94
    v_cmp_gt_u32 vcc, {cfg.TL}, v0
    s_lshl_b32 s{sT1}, s{sW}, 20
    s_add_u32 s{sT2}, s{sT2}, s{sT1}
    v_cndmask_b32 v{vTch}, v95, v94, vcc
    v_add_u32 v{vA[2]}, {8*KT}, v{vA[0]}
"""))
    if cfg.c3t: add(c3_touch(94, vDum, 0, 12))
    if cfg.mall != 3:
        assert cfg.trow % 8 == 0 and cfg.trow // 8 <= 64
        add(parse(f"""
    v_min_u32 v94, {cfg.trow // 8 - 1}, v0
    v_lshl_add_u32 v94, v94, 7, s{sT2}
    global_load_dword v{vDum}, v94, s[12:13] 
    v_add_u32 v94, {cfg.trow * 16}, v94
    global_load_dword v{vDum}, v94, s[12:13]
"""))
    add([I(f's_lshr_b32 s{sT1}, s2, 3'), I(f's_and_b32 s{sT1}, s{sT1}, 3'), I(f's_lshl_b32 s{sT1}, s{sT1}, 2'), I(f's_add_u32 s{sT1}, s{sT1}, s{sW}')] + code_touch(cfg, 4, 6, 4, sT1))
    add(stamp(13, cfg))
    out.append(Page()); out.append(I('L_code4:'))
    out.extend(lin_alt(eg)); trace.extend(lin(eg))
    print('end game est cycles', est_cycles(eg), file=sys.stderr)
    print('tile est cycles', est_cycles(tb), 'instrs', len(lin(tb)), file=sys.stderr)
    out.append(I('L_tail:'))
    vme_n0 = (vme.n, dict(vme.tag), vme.done)
    tail(cfg, out, trace, vme, cell, nr)
    out.extend([I('L_k1_end:'), I('s_endpgm')])
    out, npages = paginate(out)
    print('pages', npages, file=sys.stderr)
    vA[2] = 93
    out.extend(slow_path(cfg, salu_setup, seed, cell))
    pos = {x.text: i for i, x in enumerate(out) if x.label}
    for k in (0, 4): assert not cfg.l2code or pos[f'L_pc{k}:'] < pos[f'L_code{k}:'] < pos['L_k1_end:']
    errs = check_hazards(trace, 'k1') + check_scc(out, 'k1')
    for e in errs: print(e, file=sys.stderr)
    return text(out)

def slow_path(cfg, salu_setup, seed, fast_cell):
    import copy
    vMx = [vO + q for q in range(5)]
    c = copy.copy(cfg); c.touch = 0; c.mall = 0; c.stamps = 0
    o = parse(f"""
.p2align 8
L_restart:
    s_waitcnt vmcnt(0) lgkmcnt(0)
    s_barrier
    s_mov_b32 s{sSlow}, 1
    s_branch L_again
L_slow:
    s_waitcnt vmcnt(0) lgkmcnt(0)
    s_mov_b32 s{sT2}, 0
""")
    o += [I(f'v_mov_b32 v{r}, 0xff800000') for r in vMx]
    o.append(I('L_maxloop:')); body = [I('s_barrier')]
    for m, d in kv_dmas(c, sK, f's{sT2}', base_imm=0): body += [m, I('s_nop 0'), d]
    body += [I('s_waitcnt vmcnt(0)'), I('s_barrier')] + k_reads(0) + k_reads(1) + [I('s_waitcnt lgkmcnt(0)')]
    for u in range(9):
        q = UNITS[u][1]; S = Sreg(u)
        body += [I(m) for m in qk(u, UNITS[u])] + [I('s_nop 7')]
        body += [I(f'v_max3_f32 v{vMx[q]}, v{vMx[q]}, v{S+2*j}, v{S+2*j+1}') for j in range(4)]
    body += [I(f's_add_u32 s{sT2}, s{sT2}, 16384'), I(f's_cmp_lt_u32 s{sT2}, 0x40000'), I('s_cbranch_scc1 L_maxloop')]
    o += body
    m2 = []
    for sw in ('32', '16'):
        for q in range(5): m2.append(I(f'v_mov_b32 v{vS+q}, v{vMx[q]}'))
        m2.append(I('s_nop 1'))
        for q in range(5): m2.append(I(f'v_permlane{sw}_swap_b32 v{vS+q}, v{vMx[q]}'))
        for q in range(5): m2.append(I(f'v_max_f32 v{vMx[q]}, v{vMx[q]}, v{vS+q}'))
    m2 += [I(f'ds_write_b32 v6, v{vMx[4]}'), I('s_waitcnt lgkmcnt(0)'), I('s_barrier'), I(f'ds_read_b32 v{vS}, v7'), I('s_waitcnt lgkmcnt(0)'),
           I(f'v_max_f32 v{vMx4}, v{vMx[4]}, v{vS}')] + [I(f'v_accvgpr_write_b32 a{aMx+q}, v{vMx[q]}') for q in range(4)]
    for srd, t, off in ((sK, 0, 0), (sV, 0, KT), (sK, 1, RT), (sV, 1, RT + KT), (sK, 2, 2*RT)):
        m2 += [I(f's_add_u32 s{sT2}, s{sKr}, {16384*t}'), I(f's_and_b32 s{sT2}, s{sT2}, 0x3ffff')]
        for m, d in kv_dmas(c, srd, f's{sT2}', base_imm=off): m2 += [m, I('s_nop 0'), d]
    m2 += [I('s_waitcnt vmcnt(0)'), I('s_barrier')]
    t0, l0 = tile_body(c, first=True, slow=True)
    tb, l1 = tile_body(c, slow=True)
    hd = Gap(None); hd.post = k_reads(0) + k_reads(1) + [I('s_waitcnt lgkmcnt(0)')]
    gq = [Gap(m) for m in qk(0, UNITS[0])]; gq[-1].post.append(I('s_nop 7'))
    eg, shadows, cell, nr = endgame(c, True, seed(0))
    assert cell == fast_cell
    insert_lgkm([hd] + gq + t0 + tb + tb + eg)
    for f in l0 + l1 + [shadows]: f()
    salu_setup(t0)
    o += m2 + lin([hd] + gq + t0) + [I('L_stile:')] + lin(tb) + [I('s_cbranch_scc1 L_stile'), I(f'v_add_u32 v{vA[2]}, {8*KT}, v{vA[0]}')] + lin_alt(eg)
    o += [I('s_waitcnt vmcnt(0)'), I('s_branch L_tail')]
    tr = body + body + m2 + lin([hd] + gq + t0 + tb + tb + eg)
    for e in check_hazards(tr, 'slow'): print(e, file=sys.stderr)
    return o

class VM:
    def __init__(self): self.n = 0; self.tag = {}; self.done = 0
    def issue(self, tag, k=1): self.n += k; self.tag[tag] = self.n
    def need(self, *tags):
        m = max(self.tag[t] for t in tags)
        if m <= self.done: return []
        self.done = m
        assert self.n - m <= 63
        return [I(f's_waitcnt vmcnt({self.n - m})')]

XCH = 5 * KT
XL = 9 * KT
vA = [1, 5, 93]
sWs, sQ, sHd, sSt1, sSt0, sFp, sFc = 45, 46, 51, 52, 53, 54, 50
sQ = 96
sSq = 84

def tail_setup_valu():
    return parse(f"""
    v_bfe_u32 v3, v0, 2, 2
    v_mul_u32_u24 v3, 1056, v3
    v_lshrrev_b32 v4, 4, v0
    v_lshl_add_u32 v3, v4, 7, v3
    v_and_b32 v4, 3, v0
    v_lshl_add_u32 v3, v4, 3, v3
    v_add_u32 v{vA[0]}, s{sKVw}, v3
    v_add_u32 v{vA[1]}, {4*KT}, v{vA[0]}
    v_lshlrev_b32 v2, 4, v0
    v_lshl_add_u32 v3, v0, 4, s78
    v_xor_b32 v4, 4096, v3
    v_add_u32 v3, {XCH}, v3
    v_add_u32 v4, {XCH}, v4
    v_lshl_add_u32 v6, v0, 2, s79
    v_add_u32 v6, {XL}, v6
    v_xor_b32 v7, 256, v6
""")
assert XL % 512 == 0

def tail_setup_salu():
    G = [[f's_mul_i32 s{sT2}, s{sJ}, 9'], [f's_lshl_b32 s{sSq}, s{sPar}, 2'], [f's_add_u32 s{sSq}, s{sSq}, s{sT2}'], [f's_lshl_b32 s{sSq}, s{sSq}, 17'],
         [f's_add_u32 s{sSq+1}, s{sSq}, 131072'], [f's_add_u32 s{sSq+2}, s{sSq}, {2*131072}'], [f's_add_u32 s{sSq+3}, s{sSq}, {3*131072}'],
         [f's_add_u32 s{sT2}, s{sT2}, 8'], [f's_lshl_b32 s{sT2}, s{sT2}, 17'], [f's_lshl_b32 s{sSq+4}, s{sPar}, 11'], [f's_add_u32 s{sSq+4}, s{sSq+4}, s{sT2}'],
         [f's_lshr_b32 s{sT2}, s{sMt}, 1'], [f's_mul_i32 s{sT2}, s{sT2}, 9'], [f's_and_b32 s{sT3}, s{sMt}, 1'], [f's_lshl_b32 s{sC1}, s{sT3}, 2'],
         [f's_add_u32 s{sT2}, s{sT2}, s{sC1}'], [f's_sub_u32 s{sC1}, 8, s{sC1}'], [f's_mul_i32 s{sT3}, s{sBp}, 18'], [f's_add_u32 s{sT2}, s{sT2}, s{sT3}'],
         [f's_lshl_b32 s{sT3}, s{sT2}, 17'], [f's_lshl_b32 s{sHd}, s{sW}, 15'], [f's_add_u32 s{sT3}, s{sT3}, s{sHd}'],
         [f's_add_u32 s{sOO}, s18, s{sT3}', f's_addc_u32 s{sOO+1}, s19, 0'], [f's_sub_u32 s{sOO+2}, {8*18*131072}, s{sT3}'], [f's_mov_b32 s{sOO+3}, 0x20000'],
         [f's_lshl_b32 s{sT3}, s{sT2}, 14'], [f's_add_u32 s{sOut}, s14, s{sT3}', f's_addc_u32 s{sOut+1}, s15, 0'], [f's_sub_u32 s{sOut+2}, {8*288*1024}, s{sT3}'],
         [f's_mov_b32 s{sOut+3}, 0x20000'], [f's_lshl_b32 s{sHd}, s{sC1}, 17'],
         [f's_lshl_b32 s{sFp}, s{sB}, 2'], [f's_lshr_b32 s{sT3}, s{sH}, 3'], [f's_add_u32 s{sFp}, s{sFp}, s{sT3}'], [f's_lshl_b32 s{sFp}, s{sFp}, 3'],
         [f's_lshl_b32 s{sFc}, s{sBp}, 2'], [f's_add_u32 s{sFc}, s{sFc}, s{sW}'], [f's_lshl_b32 s{sFc}, s{sFc}, 3']]
    return [[I(x) for x in g] for g in G]

def tail(cfg, out, trace, vm, cell, nr):
    def add(seq): out.extend(seq); trace.extend(seq)
    acc = 96
    NR = 4; aB = aRing
    NB = len(RBLK); NP = min(cfg.NP, NB)
    vWO2 = 6; vOm = 7; vOut = 14
    def R(t, o, n):
        k, b = RBLK[t % NB]
        return f'{k}[{b+o}:{b+o+n-1}]'
    cell = dict(cell)
    a_reads = lambda t: wo_reads(t, cell[t])
    def w_dma(t, c):
        cell[t] = c
        L = [(I(f's_add_u32 m0, s{sKVw}, {c*KT + 32*j}'), I(f'buffer_load_dwordx4 v{vWO2}, {sr(sWO)}, s{sWs} offen offset:{1024*j}{cfg.tw} lds')) for j in range(4)]
        return L, [I(f's_mov_b32 s{sWs}, {32768*(t+1)}')]
    st = dict(nd=max(cell) + 1)
    def w_lin(c):
        L, post = w_dma(st['nd'], c); o = []
        for m, d in L: o += [m, I('s_nop 0'), d]
        vm.issue(('w', st['nd']), 4); st['nd'] += 1
        return o + post
    add(stamp(6, cfg))
    vT = 36
    ep = [I(f'v_mov_b32 v{vWO2}, v{vWO}'), I(f'v_mov_b32 v4, v{vA[2]}'), I(f's_mov_b32 s{sWs}, {32768*st["nd"]}'),
          I(f'v_rcp_f32 v{vT}, v{vLq[3]}'), I(f'v_add_f32 v{vT+5}, v{vLq[0]}, v{vLq[1]}'), I('s_nop 3')]
    vA[2] = 4
    b = vO + 96
    for k in range(4):
        ep += [I(f'v_mul_f32 v{b+8*k+e}, v{vT}, v{b+8*k+e}') for e in range(8)]
        ep += [I(f'v_cvt_pk_bf16_f32 v{b+8*k+e}, v{b+8*k+2*e}, v{b+8*k+2*e+1}') for e in range(4)]
        ep.append(I(f'buffer_store_dwordx4 {vr(b+8*k,4)}, v2, {sr(sO)}, s{sSq+3} offen offset:{1024*k}{cfg.o_store}'))
    vm.issue('st', 4)
    ep += parse(f"""
    v_add_f32 v{vT+6}, v{vLq[2]}, v{vLq[3]}
    v_min3_f32 v{vT+7}, v{vLq[0]}, v{vLq[1]}, v{vLq[2]}
    v_add_f32 v{vT+5}, v{vT+5}, v{vT+6}
    v_min3_f32 v{vT+7}, v{vT+7}, v{vLq[3]}, v{vLq[4]}
    v_add_f32 v{vT+5}, v{vT+5}, v{vLq[4]}
    v_cmp_nle_f32 vcc, {f32(L_LO)}, v{vT+7}
    s_nop 1
    s_mov_b64 s[{sT0+1}:{sT0+2}], vcc
    v_cmp_nge_f32 vcc, {f32(L_HI)}, v{vT+5}
    s_nop 1
    s_or_b64 vcc, vcc, s[{sT0+1}:{sT0+2}]
    s_cmp_lg_u64 vcc, 0
    s_cselect_b32 s{sT0}, 1, 0
    s_lshl_b32 s{sT1}, s{sW}, 2
    s_add_u32 s{sT1}, s{sT1}, {XF}
    v_mov_b32 v{vT+5}, s{sT0}
    v_mov_b32 v{vT+6}, s{sT1}
    ds_write_b32 v{vT+6}, v{vT+5}
    v_mov_b32 v{vT+4}, {XF}
    s_waitcnt lgkmcnt(0)
""")
    assert (sT0 + 1) % 2 == 0
    add(ep)
    add(stamp(7, cfg))
    free = [cell[t] for t in range(4, nr)]
    p = []
    if cfg.c3 == 1:
        p += c3_touch(10, 13); vm.issue('t')
    def pump(limit):
        o = []
        while free and st['nd'] < min(limit, 32): o += w_lin(free.pop(0))
        return o
    def drain():
        nonlocal nr
        o = vm.need(('w', nr)) + a_reads(nr) + [I('s_waitcnt lgkmcnt(0)')]
        free.append(cell[nr]); nr += 1
        return o
    p += pump(st['nd'] + cfg.PRE)
    p += parse(f"""
    s_and_b32 s{sT3}, s{sMt}, 1
    v_bfe_u32 v10, v0, 3, 1
    v_mov_b32 v11, 0x10000000
    v_cmp_eq_u32 vcc, s{sT3}, v10
    v_and_b32 v10, 15, v0
    v_lshrrev_b32 v12, 4, v0
    v_cndmask_b32 v{vOm}, v11, v2, vcc
    v_lshlrev_b32 v12, 3, v12
    v_lshl_add_u32 v12, v10, 10, v12
    s_lshl_b32 s{sT0}, s{sNt}, 7
    s_lshl_b32 s{sT1}, s{sW}, 5
    s_add_u32 s{sT0}, s{sT0}, s{sT1}
    v_add_u32 v{vOut}, s{sT0}, v12
    v_cndmask_b32 v{vOut+1}, v11, v{vOut}, vcc
    v_mov_b32 v10, 1
""")
    p += vm.need('st') + [I('s_barrier'), I(f'ds_read_b128 {vr(vT+8, 4)}, v{vT+4}')] + pump(st['nd'] + 1)
    p += parse(f"""
    s_waitcnt lgkmcnt(0)
    v_or3_b32 v{vT+8}, v{vT+8}, v{vT+9}, v{vT+10}
    v_or_b32 v{vT+8}, v{vT+8}, v{vT+11}
    s_nop 0
    v_readfirstlane_b32 s{sT0}, v{vT+8}
    s_nop 1
    s_andn2_b32 s{sT0}, s{sT0}, s{sSlow}
    {'s_mov_b32 s%d, 0' % sT0 if cfg.abl else ''}
    s_cmp_lg_u32 s{sT0}, 0
    s_cbranch_scc1 L_restart
    s_cmp_lg_u32 s{sW}, 0
    s_cbranch_scc1 L_published
    s_mov_b64 exec, 1
    buffer_atomic_add v10, off, {sr(sFl)}, s{sFp}
    s_mov_b64 exec, -1
L_published:
""")
    add(p)
    add(stamp(8, cfg))
    free.append(5)
    p = []
    poll = I(f'buffer_load_dword v11, off, {sr(sFl)}, s{sFc} sc1')
    hd_ = [0]
    def head_setup():
        h = hd_[0]; hd_[0] += 1
        return [I(f's_mov_b32 s{sQ+q}, {131072*q + 4096*h}') for q in range(4)] + [I(f's_add_u32 s{sQ+4}, s{sHd}, {4096*h}')]
    while nr < NP - cfg.PX:
        p += pump(32)
        if nr == NP - cfg.PX - cfg.PE: p += [I('s_mov_b64 exec, 1'), poll, I('s_mov_b64 exec, -1')]; vm.issue('poll')
        p += drain()
    p += head_setup()
    add(p)
    add(stamp(9, cfg))
    add([I(f's_mov_b32 s{sT2}, 0x200000')] + vm.need('poll') + parse(f"""
L_poll:
    v_readfirstlane_b32 s{sT1}, v11
    s_nop 1
    s_cmp_ge_u32 s{sT1}, 8
    s_cbranch_scc1 L_ready
    s_sub_u32 s{sT2}, s{sT2}, 1
    s_cmp_eq_u32 s{sT2}, 0
    s_cbranch_scc1 L_ready
    s_mov_b64 exec, 1
    {poll.text}
    s_mov_b64 exec, -1
    s_waitcnt vmcnt(0)
    s_branch L_poll
L_ready:
"""))
    add(stamp(10, cfg))
    def o_load(t, q):
        return I(f'buffer_load_dwordx4 {ar(aB+20*(t%NR)+4*q, 4)}, v{vOm if q == 4 else 2}, {sr(sOO)}, s{sQ+q} offen offset:{1024*(t&3)}{cfg.k2_o}')
    p = []
    for t in range(0, NR, 2):
        if t and t % 4 == 0: p += head_setup()
        for q in range(5): p += [o_load(t, q), o_load(t + 1, q)]; vm.issue(('o', t, q), 2)
        if nr < NP: p += pump(32) + drain()
    while nr < NP: p += pump(32) + drain()
    p += pump(32)
    add(p)
    add(stamp(14, cfg))
    gs = []; needs = {}
    one = lambda t, q, nt, z=False: Gap(mf(vr(acc+16*q+4*nt, 4), R(t, 4*nt, 4), ar(aB+20*(t%NR)+4*q, 4), '0' if z else vr(acc+16*q+4*nt, 4)))
    pair = lambda t, q, nt: [one(t + k, q, nt, t == 0 and i == 0) for i, k in enumerate((1, 0) if nt & 1 and REV[0] else (0, 1))]
    for t in range(0, 28, 2):
        base = len(gs)
        for q in range(5):
            for nt in range(4): gs += pair(t, q, nt)
        for q in range(5): needs.setdefault(base - 1 + 8*q, []).append(('o', t, q))
    for q in range(5):
        needs.setdefault(len(gs) - 1, []).append(('o', 28, q))
        for nt in (1, 2, 3): gs += pair(28, q, nt)
    done = {}
    for q in range(5):
        needs.setdefault(len(gs) - 1, []).append(('o', 30, q))
        for nt in (1, 2, 3): gs += pair(30, q, nt); done[nt, q] = len(gs) - 1
    for q in range(5): gs += [one(t, q, 0) for t in range(28, 32)]
    busy = lambda g: gs[g].mem or g in needs
    for t in range(0, 32 - NR, 2):
        base = 20*t
        hs = head_setup() if (t + NR) % 4 == 0 else None
        for q in range(5):
            for k in range(2):
                x = o_load(t + NR + k, q); x.tag = ('o', t + NR, q); g = base + 8*q + 8 + 2*k
                gs[g].mem.append(x); gs[g].nosh = True
            if hs: gs[base + 8*q + 6].sh.append(hs[q])
    t = 0; pend = []
    while nr < 32 or st['nd'] < 32:
        base = 20*t; g = base + 1
        for c, r in pend: free.append((c, r))
        pend = []
        while nr < 32 and len(pend) < 2 and (nr < NB or nr - NB < t):
            r = a_reads(nr)
            while busy(g) or gs[g].sh: g += 1
            needs.setdefault(g, []).append(('w', nr))
            for k in range(4):
                while gs[g].mem: g += 1
                gs[g].mem += r[2*k:2*k+2]
            pend.append((cell[nr], r)); nr += 1; g += 1
        while free and st['nd'] < 32 and g < base + 28:
            c = free.pop(0); c, fence = c if isinstance(c, tuple) else (c, [])
            L, post = w_dma(st['nd'], c)
            for j, (m, d) in enumerate(L):
                g += 1
                while busy(g) or gs[g].sh or busy(g - 1) and getattr(gs[g-1], 'nosh', False) or gs[g-1].sh or (g - 1) in needs: g += 1
                gs[g].mem.append(d); gs[g].nosh = True; d.tag = ('w', st['nd']); gs[g-1].sh.append(m)
                if j == 0: gs[g].fence += fence
            g += 1
            while gs[g].sh or getattr(gs[g], 'nosh', False) or g in needs: g += 1
            gs[g].sh.append(post[0]); st['nd'] += 1
        t += 2
    g = 20*27 + 1
    red = [([], I(f'v_add_u32 v3, s{sKVw}, v2'))]
    for k in range(1, 4): red.append(([I(f's_xor_b32 s{sT0}, s{sW}, {k}'), I(f's_mul_i32 s{sT0}, s{sT0}, 4224')], I(f'v_add_u32 v{10+k}, s{sT0}, v2')))
    for pre, x in red:
        for y in pre:
            while gs[g].sh or g in needs: g += 1
            gs[g].sh.append(y); g += 1
        gs[g].valu.append(x); g += 1
    slot = lambda k, q: ((5*(k-1) + q) >> 2) * KT + ((5*(k-1) + q) & 3) * 1024
    for (k, q), g in done.items(): gs[g + 8].mem.append(I(f'ds_write_b128 v3, {vr(acc+16*q+4*k, 4)} offset:{slot(k, q)}'))
    gb = max(done.values()) + 8 + cfg.FB
    gs[gb].post += [I('s_waitcnt lgkmcnt(0)'), I('s_barrier')]
    rds = [I(f'ds_read_b128 {vr(acc+16*q+4*k, 4)}, v{10+k} offset:{slot(k, q)}') for q in range(5) for k in range(1, 4)]
    for i, x in enumerate(rds): (gs[gb + 1 + i // 2].mem if gb + 1 + i // 2 < 640 else gs[-1].post).append(x)
    hd = vm.need(*needs.pop(-1))
    for p, g in enumerate(gs):
        if p in needs:
            w = vm.need(*needs[p])
            if w: g.vm = int(re.search(r'\d+', w[0].text).group(0))
        for x in g.mem:
            if x.k in ('dma', 'vload'): vm.issue(x.tag)
    insert_lgkm(gs)
    print('out-proj est cycles', est_cycles(gs), file=sys.stderr)
    add(hd + lin(gs))
    add(stamp(11, cfg))
    ep = [I(f's_lshl_b32 s{sC1}, s{sC1}, 14')]
    for q in range(5):
        b = acc + 16*q
        ep.append(I(f's_waitcnt lgkmcnt({12-3*q})'))
        for k in range(4): ep.append(I(f'v_add_f32 v{b+8+k}, v{b+8+k}, v{b+12+k}'))
        for k in range(4): ep.append(I(f'v_add_f32 v{b+4+k}, v{b+4+k}, v{b+8+k}'))
        for k in range(4): ep.append(I(f'v_add_f32 v{b+k}, v{b+k}, v{b+4+k}'))
        ep += [I(f'v_cvt_pk_bf16_f32 v{b}, v{b}, v{b+1}'), I(f'v_cvt_pk_bf16_f32 v{b+1}, v{b+2}, v{b+3}')]
        if q < 4: ep += [I(f's_mov_b32 s{sT0}, {16384*q}'), I(f'buffer_store_dwordx2 {vr(b,2)}, v{vOut}, {sr(sOut)}, s{sT0} offen{cfg.out_store}')]
        else: ep.append(I(f'buffer_store_dwordx2 {vr(b,2)}, v{vOut+1}, {sr(sOut)}, s{sC1} offen{cfg.out_store}'))
    add(ep)
    add(stamp(12, cfg))
    if cfg.stamps == 5: add([I('s_waitcnt vmcnt(0)')] + stamp(14, cfg))
    add(stamp_out(cfg, 0))

HEADER = open('standalone__mha_block_cached__near_ridge.s.ref').read().split('; Override launch')[0]

DOC = """
; One workgroup (4 waves, one per SIMD) per (batch, head); all matrix work is v_mfma_f32_16x16x32_bf16.
;  1. Q^T = wq_h^T x_b^T, k streamed through three LDS stages by LDS-DMA; scaled by 128^-0.5*log2(e) in fp32, rounded to bf16.
;  2. S^T = K Q^T, P = exp2(S), O^T += V^T P over 16 tiles of 64 keys (LDS ring of three). A wave owns four 16-row q tiles and
;     finite or leaves [2^-32, 2^40] the workgroup starts over (L_restart / L_slow), finds the true row maxima in a pass of its
;     own and repeats the attention with them subtracted.
;  4. The same workgroup then computes a 72 x 64 tile of out = O wo for one batch: each wave waits for the counter of its eight
"""
def build(path, cfg, meta):
    ks = [('standalone__mha_block_cached__near_ridge_kernel', k1(cfg), 512, 102, 256, 256)]
    ll = [HEADER.rstrip(), f'; @launch grid=(256,1,1) block=(256,1,1) lds={LDS1}', DOC.strip()]
    asmlib.build(path, ks, ll, with_meta=meta)

if __name__ == '__main__':
    cfg = Cfg()
    for a in sys.argv[2:]:
        k, v = a.split('=')
        if k == 'ones': cfg.ones = tuple(int(c) for c in v)
        else: setattr(cfg, k, (' ' + v.replace('+', ' ') if v else '') if isinstance(getattr(cfg, k), str) else type(getattr(cfg, k))(int(v)))
    name = sys.argv[1]
    build(name + '.s', cfg, False)
    build(name + '_m.s', cfg, True)
    asmlib.assemble(name + '_m.s', name + '.co')
```
